```python
import torch

def _softmax(x, axis=-1):
    return torch.softmax(x, dim=axis)
def _gelu(x):
    return torch.nn.functional.gelu(x, approximate="tanh")
def _silu(x):
    return torch.nn.functional.silu(x)
def _sigmoid(x):
    return torch.sigmoid(x)
def _layernorm(x, axis=-1, eps=1e-5):
    m = x.mean(dim=axis, keepdim=True)
    v = x.var(dim=axis, keepdim=True, unbiased=False)
    return (x - m) / torch.sqrt(v + eps)
def _scatter_add(tgt, idx, src, axis=0):
    return tgt.clone().index_add_(axis, idx, src)
def _segment_sum(src, seg, n):
    out = torch.zeros((n,) + src.shape[1:], dtype=src.dtype)
    return out.index_add_(0, seg, src)
def _pad(x, pw):
    flat = tuple(v for pair in reversed(pw) for v in pair)
    return torch.nn.functional.pad(x, flat)

kernel_name = 'recurrent_scan__sliding_block_cached__dense_activation_squared_relu__decode'

def setup_inputs():

    _w = (lambda a: (lambda t: t.to(torch.bfloat16) if t.is_floating_point() else t)(torch.as_tensor(a)))
    def _A_setup():
        B, Sq, D = 2, 1, 512
        Hq, Hkv, Sk, Dh = 32, 32, 4096, 128
        assert Hq % Hkv == 0, (Hq, Hkv)
        return {
            "x": _w((lambda *s: torch.randn(*s, dtype=torch.bfloat16) * 0.05)(B, Sq, D)),
            "k_cache": _w((lambda *s: torch.randn(*s, dtype=torch.bfloat16) * 0.8)(B, Hkv, Sk, Dh)),
            "v_cache": _w((lambda *s: torch.randn(*s, dtype=torch.bfloat16) * 0.2)(B, Hkv, Sk, Dh)),
            "wq": _w((lambda *s: torch.randn(*s, dtype=torch.bfloat16) * 0.8)(D, Hq * Dh) * (D ** -0.5)),
            "wo": _w((lambda *s: torch.randn(*s, dtype=torch.bfloat16) * 0.2)(Hq * Dh, D) * ((Hq * Dh) ** -0.5)),
        }
    _A_in = _A_setup()

    def _B_setup():
        B, S, D, F = 2, 1, 512, 1376
        return {
            "x": _w((lambda *s: torch.randn(*s, dtype=torch.bfloat16) * 0.05)(B, S, D)),
            "w1": _w((lambda *s: torch.randn(*s, dtype=torch.bfloat16) * 0.1)(D, F)),
            "b1": _w((lambda *s: torch.randn(*s, dtype=torch.bfloat16) * 0.8)(F)),
            "w2": _w((lambda *s: torch.randn(*s, dtype=torch.bfloat16) * 0.1)(F, D)),
            "b2": _w((lambda *s: torch.randn(*s, dtype=torch.bfloat16) * 6.4)(D)),
        }
    _B_in = _B_setup()

    return {
        "A_x": _A_in["x"],
        "A_k_cache": _A_in["k_cache"],
        "A_v_cache": _A_in["v_cache"],
        "A_wq": _A_in["wq"],
        "A_wo": _A_in["wo"],
        "B_x": _B_in["x"],
        "B_w1": _B_in["w1"],
        "B_b1": _B_in["b1"],
        "B_w2": _B_in["w2"],
        "B_b2": _B_in["b2"],
    }

def reference(A_x, A_k_cache, A_v_cache, A_wq, A_wo, B_x, B_w1, B_b1, B_w2, B_b2):
    def _A_ref(x, k_cache, v_cache, wq, wo):
        B, Sq, D = x.shape
        Hq, Dh = 32, 128
        Hkv, Sk = k_cache.shape[1], k_cache.shape[2]
        W = min(4096, max(256, Sk // 4))
        rep = Hq // Hkv
        q = (lambda x, *d: x.permute(*d))((x @ wq).reshape(B, Sq, Hq, Dh), 0, 2, 1, 3)
        k = (lambda x, n, axis: torch.repeat_interleave(x, n, dim=axis))(k_cache[:, :, Sk - W:, :], rep, axis=1)
        v = (lambda x, n, axis: torch.repeat_interleave(x, n, dim=axis))(v_cache[:, :, Sk - W:, :], rep, axis=1)
        scores = torch.einsum("bhqd,bhkd->bhqk", q, k) * (Dh ** -0.5)
        p = _softmax(scores, axis=-1)
        o = torch.einsum("bhqk,bhkd->bhqd", p, v)
        return (lambda x, *d: x.permute(*d))(o, 0, 2, 1, 3).reshape(B, Sq, Hq * Dh) @ wo

    def _B_ref(x, w1, b1, w2, b2):
        h = torch.einsum("bsd,df->bsf", x, w1) + b1
        zero = torch.zeros_like(h)
        r = torch.where(h > zero, h, zero)
        h = r * r
        out = torch.einsum("bsf,fd->bsd", h, w2) + b2
        return out

    x = A_x
    xn = _layernorm(x, axis=-1)
    s = _A_ref(xn, A_k_cache, A_v_cache, A_wq, A_wo)
    g = _silu(_B_ref(xn, B_w1, B_b1, B_w2, B_b2))
    return x + s * g
```

```python
import sys, os
NAME = "recurrent_scan__sliding_block_cached__dense_activation_squared_relu__decode"

class G:
    def __init__(self):
        self.L = []
        self.nv = 0
        self.maxv = 0
    def e(self, s): self.L.append("    " + s)
    def lab(self, s): self.L.append(s + ":")
    def c(self, s): self.L.append("    ; " + s)
    def reset(self, n): self.nv = n
    def v(self, n=1, al=1):
        if n >= 4: al = max(al, 4) if n % 4 == 0 else max(al, 2)
        elif n >= 2: al = max(al, 2)
        self.nv = (self.nv + al - 1) // al * al
        r = self.nv; self.nv += n
        self.maxv = max(self.maxv, self.nv)
        return r

def vr(b, n): return f"v[{b}:{b+n-1}]"
def sr(b, n): return f"s[{b}:{b+n-1}]"

QBASE = 0x1000
HBASE = QBASE + 0x40000
ABASE = HBASE + 0x20000
MLBASE = ABASE + 0x40000
FIN = MLBASE + 0x1000
BIN = FIN + 0x40000
DIAG = 0x200000
L_QP = 0; L_Q = 16384; L_ML = 16896; L_OP = 17408; L_SP = 0; LDS_BYTES = 21504

SCALE = 0x3DB504F3
LOG2E = 0x3FB8AA3B
EPS = 0x3727C5AC

def gen(diag=False, nt=True, spin=20000):
    g = G(); e = g.e
    NT = " nt" if nt else ""
    sX, sK, sV, sWQ, sWO, sW1, sB1, sW2, sB2, sOUT, sWS = 16, 18, 20, 22, 24, 28, 30, 32, 34, 36, 40
    s_wv, s_h, s_j, s_t0, s_t1, s_E, s_cnt = 3, 4, 5, 6, 7, 8, 9
    sT = [44, 45, 46, 47]
    s_hi, s_scale, s_l2e = 48, 49, 50
    srdA, srdB = 52, 56
    s_j1, s_cb, s_wgi = 10, 11, 12
    sM = [60, 62, 64, 66]
    ST0 = 70
    nst = [0]
    def stamp():
        if diag:
            e(f"s_memrealtime {sr(ST0+2*nst[0],2)}")
            nst[0] += 1
    def dump_stamps(vt):
        if not diag: return
        e("s_waitcnt lgkmcnt(0)")
        e(f"s_getreg_b32 s{s_t0}, hwreg(HW_REG_XCC_ID)")
        e(f"s_getreg_b32 s{s_t1}, hwreg(HW_REG_HW_ID)")
        for i in range(14):
            src = f"s{ST0+2*i}" if i < nst[0] else "0"
            e(f"v_mov_b32 v{vt+i}, {src}")
        e(f"v_mov_b32 v{vt+14}, s{s_t0}")
        e(f"v_mov_b32 v{vt+15}, s{s_t1}")
        e(f"s_mul_i32 s{s_t0}, s2, 9")
        e(f"s_add_u32 s{s_t0}, s{s_t0}, s{s_wv}")
        e(f"s_lshl_b32 s{s_t0}, s{s_t0}, 6")
        e(f"s_add_u32 s{s_t0}, s{s_t0}, {DIAG}")
        e(f"v_mov_b32 v{vt+16}, s{s_t0}")
        e("s_mov_b64 exec, 1")
        for i in range(4):
            e(f"global_store_dwordx4 v{vt+16}, {vr(vt+4*i,4)}, {sr(sWS,2)} offset:{16*i}")

    def dpp(op, d, a, b, ctl):
        e(f"{op}_dpp v{d}, v{a}, v{b} {ctl} row_mask:0xf bank_mask:0xf")
    X1, X2, HM, RM = "quad_perm:[1,0,3,2]", "quad_perm:[2,3,0,1]", "row_half_mirror", "row_mirror"
    def red8(op, regs):
        for ctl in (X1, X2, HM):
            pad = max(0, 2 - (len(regs) - 1))
            if pad: e(f"s_nop {pad-1}")
            for r in regs: dpp(op, r, r, r, ctl)
    def redgrp(op, r, tmp):
        e(f"v_mov_b32 v{tmp}, v{r}"); e("s_nop 1")
        e(f"v_permlane16_swap_b32 v{r}, v{tmp}")
        e(f"{op} v{r}, v{r}, v{tmp}")
        e(f"v_mov_b32 v{tmp}, v{r}"); e("s_nop 1")
        e(f"v_permlane32_swap_b32 v{r}, v{tmp}")
        e(f"{op} v{r}, v{r}, v{tmp}")
    def rbf(d, a):
        e(f"v_cvt_pk_bf16_f32 v{d}, v{a}, v{a}")
        e(f"v_and_b32 v{d}, s{s_hi}, v{d}")
    def rbf2(a, b, tmp):
        e(f"v_cvt_pk_bf16_f32 v{tmp}, v{a}, v{b}")
        e(f"v_lshlrev_b32 v{a}, 16, v{tmp}")
        e(f"v_and_b32 v{b}, s{s_hi}, v{tmp}")
    def mfma(d, a, b, c):
        cc = "0" if c is None else vr(c, 4)
        e(f"v_mfma_f32_16x16x32_bf16 {vr(d,4)}, {vr(a,4)}, {vr(b,4)}, {cc}")

    g.reset(1)
    lane, m, kg = g.v(), g.v(), g.v()
    msk = g.v(4)
    vFF = g.v()
    t0, t1, t2, t3 = g.v(), g.v(), g.v(), g.v()
    common_end = g.nv
    e("s_cmp_ge_u32 s2, 256")
    e("s_cbranch_scc1 L_end")
    e(f"s_load_dwordx16 {sr(16,16)}, s[0:1], 0")
    e(f"s_load_dwordx8 {sr(32,8)}, s[0:1], 64")
    e(f"s_load_dwordx2 {sr(sWS,2)}, s[0:1], 96")
    stamp()
    e(f"v_lshrrev_b32 v{t0}, 6, v0")
    e(f"v_and_b32 v{lane}, 63, v0")
    e(f"v_readfirstlane_b32 s{s_wv}, v{t0}")
    e(f"v_and_b32 v{m}, 15, v0")
    e(f"v_bfe_u32 v{kg}, v0, 4, 2")
    e(f"s_lshr_b32 s{s_h}, s2, 6")
    e(f"s_lshl_b32 s{s_h}, s{s_h}, 3")
    e(f"s_and_b32 s{s_t0}, s2, 7")
    e(f"s_add_u32 s{s_h}, s{s_h}, s{s_t0}")
    e(f"s_bfe_u32 s{s_j}, s2, 0x30003")
    e(f"s_and_b32 s{s_j1}, s{s_j}, 1")
    e(f"s_lshr_b32 s{s_cb}, s{s_j}, 1")
    e(f"s_lshl_b32 s{s_wgi}, s{s_h}, 3")
    e(f"s_add_u32 s{s_wgi}, s{s_wgi}, s{s_j}")
    e(f"s_mov_b32 s{s_hi}, 0xffff0000")
    e(f"s_mov_b32 s{s_scale}, {SCALE:#x}")
    e(f"s_mov_b32 s{s_l2e}, {LOG2E:#x}")
    e(f"s_cmp_eq_u32 s{s_wv}, 8")
    e("s_cbranch_scc1 L_comm")

    def masks_and_tags():
        e(f"v_bfe_u32 v{t0}, v{m}, 1, 2")
        e(f"v_and_b32 v{t1}, 1, v{m}")
        e(f"v_lshlrev_b32 v{t1}, 4, v{t1}")
        e(f"v_mov_b32 v{t2}, 0xffff")
        e(f"v_lshlrev_b32 v{t1}, v{t1}, v{t2}")
        for i in range(4): e(f"v_cmp_eq_u32 {sr(sM[i],2)}, {i}, v{t0}")
        e(f"v_mov_b32 v{vFF}, 0xffffff00")
        for i in range(4): e(f"v_cndmask_b32 v{msk+i}, 0, v{t1}, {sr(sM[i],2)}")
        e("s_waitcnt lgkmcnt(0)")
        e(f"s_mul_i32 s{s_t0}, s{s_E}, 0x9e3779b1")
        e(f"s_add_u32 s{s_t0}, s{s_t0}, 0x7f4a7c15")
        e(f"s_add_u32 s{sT[0]}, s{s_E}, 1")
        e(f"s_and_b32 s{sT[0]}, s{sT[0]}, 0xff")
        e(f"s_bfe_u32 s{sT[1]}, s{s_t0}, 0x80008")
        e(f"s_bfe_u32 s{sT[2]}, s{s_t0}, 0x80010")
        e(f"s_bfe_u32 s{sT[3]}, s{s_t0}, 0x80018")
    def afrag(dst, val):
        e(f"v_cvt_pk_bf16_f32 v{dst+3}, v{val}, v{val}")
        for i in range(4): e(f"v_and_b32 v{dst+i}, v{msk+i}, v{dst+3}")
    def tag4(d):
        for i in range(4): e(f"v_and_or_b32 v{d+i}, v{d+i}, v{vFF}, s{sT[i]}")
    def poll_tail(acc, lab):
        e(f"v_and_b32 v{acc}, 0xff, v{acc}")
        e(f"v_cmp_ne_u32 vcc, 0, v{acc}")
        e(f"s_cbranch_vccz {lab}_ok")
        e(f"s_sub_u32 s{s_cnt}, s{s_cnt}, 1")
        e(f"s_cmp_lg_u32 s{s_cnt}, 0")
        e(f"s_cbranch_scc1 {lab}")
        g.lab(f"{lab}_ok")

    vK, vV, vX, vXr, vWq0, vWq1, vW1, vWo, bl, vrow = [g.v() for _ in range(10)]
    xd = g.v(8); xl = g.v(8); xr = g.v()
    wq = g.v(8); w1 = g.v(8); Kf = g.v(32); Vf = g.v(32); wo = g.v(8)
    A0 = g.v(4); A1 = g.v(4); D0 = g.v(4); D1 = g.v(4)
    vL = g.v(); vTa = g.v(); vTb = g.v(); vTc = g.v(); vTd = g.v()
    qf = wq
    assert w1 == wq + 8
    s_bw, s_kv, s_row = 13, 14, 15
    e(f"s_lshr_b32 s{s_bw}, s{s_wv}, 2")
    e(f"s_and_b32 s{s_t0}, s{s_wv}, 3")
    e(f"s_lshl_b32 s{s_t0}, s{s_t0}, 13")
    e(f"s_lshl_b32 s{s_kv}, s{s_bw}, 25")
    e(f"s_lshl_b32 s{s_t1}, s{s_h}, 20")
    e(f"s_add_u32 s{s_kv}, s{s_kv}, s{s_t1}")
    e(f"s_add_u32 s{s_kv}, s{s_kv}, s{s_t0}")
    e(f"s_lshl_b32 s{s_t1}, s{s_j}, 15")
    e(f"s_add_u32 s{s_kv}, s{s_kv}, s{s_t1}")
    e(f"s_add_u32 s{s_kv}, s{s_kv}, {3072*256+4096}")
    e(f"s_lshl_b32 s{s_row}, s{s_j}, 6")
    e(f"s_lshl_b32 s{s_t0}, s{s_wv}, 3")
    e(f"s_add_u32 s{s_row}, s{s_row}, s{s_t0}")
    e(f"v_bfe_u32 v{bl}, v0, 3, 1")
    e(f"v_lshlrev_b32 v{bl}, 10, v{bl}")
    e(f"v_and_b32 v{t0}, 7, v0")
    e(f"v_lshl_add_u32 v{vX}, v{t0}, 5, v{bl}")
    e(f"v_lshl_add_u32 v{vX}, v{kg}, 8, v{vX}")
    e(f"v_lshl_add_u32 v{vrow}, v{kg}, 1, s{s_row}")
    e(f"v_lshl_add_u32 v{vXr}, v{vrow}, 1, v{bl}")
    e(f"v_lshlrev_b32 v{t1}, 4, v{m}")
    e(f"s_lshl_b32 s{s_t0}, s{s_h}, 8")
    e(f"v_lshl_add_u32 v{vWq0}, v{vrow}, 13, v{t1}")
    e(f"v_add_u32 v{vWq0}, s{s_t0}, v{vWq0}")
    e(f"v_add_u32 v{vWq1}, 0x2000, v{vWq0}")
    e(f"v_lshl_add_u32 v{vK}, v{m}, 8, s{s_kv}")
    e(f"v_lshl_add_u32 v{vK}, v{kg}, 4, v{vK}")
    e(f"v_lshl_add_u32 v{vV}, v{kg}, 10, s{s_kv}")
    e(f"v_add_u32 v{vV}, v{vV}, v{t1}")
    e(f"v_mul_u32_u24 v{vW1}, 2752, v{vrow}")
    e(f"s_mul_i32 s{s_t0}, s{s_h}, 96")
    e(f"v_add3_u32 v{vW1}, v{vW1}, v{t1}, s{s_t0}")
    e(f"s_mul_i32 s{s_t0}, s{s_h}, 6")
    e(f"s_sub_i32 s{s_t0}, 172, s{s_t0}")
    e(f"s_min_i32 s{s_t0}, s{s_t0}, 6")
    e(f"v_cmp_gt_i32 vcc, s{s_t0}, v{m}")
    e(f"v_bfrev_b32 v{t2}, 1")
    e(f"s_lshl_b32 s{s_t0}, s{s_h}, 7")
    e(f"s_lshl_b32 s{s_t1}, s{s_j1}, 6")
    e(f"v_cndmask_b32 v{vW1}, v{t2}, v{vW1}, vcc")
    e(f"s_add_u32 s{s_t0}, s{s_t0}, s{s_t1}")
    e(f"s_lshl_b32 s{s_t1}, s{s_wv}, 3")
    e(f"s_add_u32 s{s_t0}, s{s_t0}, s{s_t1}")
    e(f"s_lshl_b32 s{s_t0}, s{s_t0}, 10")
    e(f"s_lshl_b32 s{s_t1}, s{s_cb}, 8")
    e(f"s_add_u32 s{s_t0}, s{s_t0}, s{s_t1}")
    e(f"v_lshl_add_u32 v{vWo}, v{kg}, 11, v{t1}")
    e(f"v_add_u32 v{vWo}, s{s_t0}, v{vWo}")
    e("s_waitcnt lgkmcnt(0)")
    stamp()
    e(f"global_load_dwordx4 {vr(xd,4)}, v{vX}, {sr(sX,2)}")
    e(f"global_load_dwordx4 {vr(xd+4,4)}, v{vX}, {sr(sX,2)} offset:16")
    e(f"global_load_dword v{xr}, v{vXr}, {sr(sX,2)}")
    e(f"global_load_dwordx4 {vr(wq,4)}, v{vWq0}, {sr(sWQ,2)}{NT}")
    e(f"global_load_dwordx4 {vr(wq+4,4)}, v{vWq1}, {sr(sWQ,2)}{NT}")
    e(f"s_mov_b32 s{srdA}, s{sW1}")
    e(f"s_mov_b32 s{srdA+1}, s{sW1+1}")
    e(f"s_mov_b32 s{srdA+2}, {512*2752}")
    e(f"s_mov_b32 s{srdA+3}, 0x20000")
    e(f"buffer_load_dwordx4 {vr(w1,4)}, v{vW1}, {sr(srdA,4)}, 0 offen")
    e(f"buffer_load_dwordx4 {vr(w1+4,4)}, v{vW1}, {sr(srdA,4)}, 0 offen offset:2752")
    for u in range(2):
        for s in range(4):
            e(f"global_load_dwordx4 {vr(Kf+(u*4+s)*4,4)}, v{vK}, {sr(sK,2)} offset:{(u-1)*4096+s*64}{NT}")
    for u in range(2):
        for t in range(4):
            e(f"global_load_dwordx4 {vr(Vf+(u*4+t)*4,4)}, v{vV}, {sr(sV,2)} offset:{(u-1)*4096+t*256}{NT}")
    e(f"global_load_dwordx4 {vr(wo,4)}, v{vWo}, {sr(sWO,2)}{NT}")
    e(f"global_load_dwordx4 {vr(wo+4,4)}, v{vWo}, {sr(sWO,2)} offset:1024{NT}")
    e(f"s_load_dword s{s_E}, {sr(sWS,2)}, 0")
    stamp()
    masks_and_tags()
    e(f"s_lshl_b32 s{s_t0}, s{s_wv}, 11")
    e(f"v_lshl_add_u32 v{vL}, v{lane}, 4, s{s_t0}")
    e("s_waitcnt vmcnt(23)")
    stamp()
    for i in range(8):
        e(f"v_lshlrev_b32 v{xl+i}, 16, v{xd+i}")
        e(f"v_and_b32 v{xd+i}, s{s_hi}, v{xd+i}")
    e(f"v_add_f32 v{t0}, v{xl}, v{xd}")
    e(f"v_add_f32 v{t1}, v{xl+1}, v{xd+1}")
    for i in range(2, 8, 2):
        e(f"v_add_f32 v{t0}, v{t0}, v{xl+i}")
        e(f"v_add_f32 v{t1}, v{t1}, v{xl+i+1}")
        e(f"v_add_f32 v{t0}, v{t0}, v{xd+i}")
        e(f"v_add_f32 v{t1}, v{t1}, v{xd+i+1}")
    e(f"v_add_f32 v{t0}, v{t0}, v{t1}")
    red8("v_add_f32", [t0])
    redgrp("v_add_f32", t0, t1)
    e(f"v_mul_f32 v{t0}, 0x3b000000, v{t0}")
    for i in range(8):
        e(f"v_sub_f32 v{xl+i}, v{xl+i}, v{t0}")
        e(f"v_sub_f32 v{xd+i}, v{xd+i}, v{t0}")
    e(f"v_mul_f32 v{t1}, v{xl}, v{xl}")
    e(f"v_mul_f32 v{t2}, v{xd}, v{xd}")
    for i in range(1, 8):
        e(f"v_fmac_f32 v{t1}, v{xl+i}, v{xl+i}")
        e(f"v_fmac_f32 v{t2}, v{xd+i}, v{xd+i}")
    e(f"v_add_f32 v{t1}, v{t1}, v{t2}")
    red8("v_add_f32", [t1])
    redgrp("v_add_f32", t1, t2)
    e(f"v_mul_f32 v{t1}, 0x3b000000, v{t1}")
    rbf2(t0, t1, t2)
    e(f"v_add_f32 v{t1}, {EPS:#x}, v{t1}")
    rbf(t1, t1)
    e(f"v_sqrt_f32 v{t1}, v{t1}")
    e("s_nop 0")
    rbf(t1, t1)
    e(f"v_rcp_f32 v{t1}, v{t1}")
    e("s_waitcnt vmcnt(22)")
    e(f"v_lshlrev_b32 v{t2}, 16, v{xr}")
    e(f"v_and_b32 v{t3}, s{s_hi}, v{xr}")
    e(f"v_sub_f32 v{t2}, v{t2}, v{t0}")
    e(f"v_sub_f32 v{t3}, v{t3}, v{t0}")
    rbf2(t2, t3, xr)
    e(f"v_mul_f32 v{t2}, v{t2}, v{t1}")
    e(f"v_mul_f32 v{t3}, v{t3}, v{t1}")
    afrag(A0, t2); afrag(A1, t3)
    e("s_waitcnt vmcnt(18)")
    stamp()
    mfma(D0, A0, wq, None); mfma(D1, A0, w1, None)
    mfma(D0, A1, wq+4, D0); mfma(D1, A1, w1+4, D1)
    e("s_nop 7")
    e(f"ds_write_b128 v{vL}, {vr(D0,4)} offset:{L_QP}")
    e(f"ds_write_b128 v{vL}, {vr(D1,4)} offset:{L_QP+1024}")
    e("s_waitcnt lgkmcnt(0)")
    e("s_barrier")
    e(f"s_lshl_b32 s{s_t0}, s{s_bw}, 8")
    e(f"v_lshl_add_u32 v{t0}, v{kg}, 4, s{s_t0}")
    e("s_barrier")
    stamp()
    for s in range(4):
        e(f"ds_read_b128 {vr(qf+4*s,4)}, v{t0} offset:{L_Q+64*s}")
    e("s_waitcnt vmcnt(10) lgkmcnt(0)")
    stamp()
    for s in range(4):
        mfma(D0, Kf+4*s, qf+4*s, None if s == 0 else D0)
        mfma(D1, Kf+16+4*s, qf+4*s, None if s == 0 else D1)
    e("s_nop 7")
    assert D1 == D0 + 4
    S = D0
    for i in range(0, 8, 2): rbf2(S+i, S+i+1, t0)
    for i in range(8): e(f"v_mul_f32 v{S+i}, s{s_scale}, v{S+i}")
    for i in range(0, 8, 2): rbf2(S+i, S+i+1, t0)
    mw = xd; lw = xd + 1
    e(f"v_max3_f32 v{mw}, v{S}, v{S+1}, v{S+2}")
    e(f"v_max3_f32 v{mw}, v{mw}, v{S+3}, v{S+4}")
    e(f"v_max3_f32 v{mw}, v{mw}, v{S+5}, v{S+6}")
    e(f"v_max_f32 v{mw}, v{mw}, v{S+7}")
    redgrp("v_max_f32", mw, t0)
    for i in range(8): e(f"v_sub_f32 v{S+i}, v{S+i}, v{mw}")
    for i in range(8): e(f"v_mul_f32 v{S+i}, s{s_l2e}, v{S+i}")
    for i in range(8): e(f"v_exp_f32 v{S+i}, v{S+i}")
    e(f"v_add_f32 v{lw}, v{S}, v{S+1}")
    for i in range(2, 8): e(f"v_add_f32 v{lw}, v{lw}, v{S+i}")
    redgrp("v_add_f32", lw, t0)
    e(f"s_lshl_b32 s{s_t0}, s{s_wv}, 3")
    e(f"v_mov_b32 v{t0}, s{s_t0}")
    e("s_mov_b64 exec, 1")
    e(f"ds_write_b64 v{t0}, {vr(mw,2)} offset:{L_ML}")
    e("s_mov_b64 exec, -1")
    e(f"s_lshl_b32 s{s_t0}, s{s_bw}, 5")
    e(f"v_mov_b32 v{t0}, s{s_t0}")
    e("s_waitcnt lgkmcnt(0)")
    e("s_barrier")
    e(f"ds_read_b128 {vr(xl,4)}, v{t0} offset:{L_ML}")
    e(f"ds_read_b128 {vr(xl+4,4)}, v{t0} offset:{L_ML+16}")
    e("s_waitcnt lgkmcnt(0)")
    e(f"v_max3_f32 v{t0}, v{xl}, v{xl+2}, v{xl+4}")
    e(f"v_max_f32 v{t0}, v{t0}, v{xl+6}")
    e(f"v_sub_f32 v{t0}, v{mw}, v{t0}")
    e(f"v_mul_f32 v{t0}, s{s_l2e}, v{t0}")
    e(f"v_exp_f32 v{t0}, v{t0}")
    e("s_nop 0")
    for i in range(8): e(f"v_mul_f32 v{S+i}, v{S+i}, v{t0}")
    for i in range(8): afrag(Kf+4*i, S+i)
    vOw, vAp, vMp = vK, vV, vX
    e(f"v_lshlrev_b32 v{vOw}, 5, v{m}")
    e(f"v_lshl_add_u32 v{vOw}, v{kg}, 4, v{vOw}")
    e(f"s_lshl_b32 s{s_t0}, s{s_wv}, 9")
    e(f"v_add_u32 v{vOw}, s{s_t0}, v{vOw}")
    stamp()
    for i in range(8):
        e(f"s_waitcnt vmcnt({9-i})")
        mfma(A0, Kf+4*i, Vf+4*i, None if i == 0 else A0)
    stamp()
    e(f"v_and_b32 v{t0}, 7, v0")
    e(f"v_lshrrev_b32 v{t1}, 1, v{bl}")
    e(f"v_lshl_add_u32 v{vAp}, v{t0}, 10, v{t1}")
    e(f"v_lshl_add_u32 v{vAp}, v{kg}, 3, v{vAp}")
    e(f"s_lshl_b32 s{s_t0}, s{s_h}, 13")
    e(f"s_lshl_b32 s{s_t1}, s{s_j1}, 8")
    e(f"s_add_u32 s{s_t0}, s{s_t0}, s{s_t1}")
    e(f"s_lshl_b32 s{s_t1}, s{s_wv}, 5")
    e("s_mov_b32 exec_hi, 0")
    e(f"ds_write_b128 v{vOw}, {vr(A0,4)} offset:{L_OP}")
    e("s_mov_b32 exec_hi, -1")
    e("s_waitcnt lgkmcnt(0)")
    e("s_barrier")
    e(f"s_add_u32 s{s_t0}, s{s_t0}, s{s_t1}")
    e(f"s_add_u32 s{s_t0}, s{s_t0}, {ABASE}")
    e(f"v_add_u32 v{vAp}, s{s_t0}, v{vAp}")
    e(f"v_lshrrev_b32 v{t1}, 7, v{bl}")
    e(f"v_lshl_add_u32 v{vMp}, v{t0}, 4, v{t1}")
    e(f"s_lshl_b32 s{s_t0}, s{s_h}, 7")
    e(f"s_add_u32 s{s_t0}, s{s_t0}, {MLBASE}")
    e(f"v_add_u32 v{vMp}, s{s_t0}, v{vMp}")
    e(f"v_and_b32 v{t1}, 1, v{kg}")
    e(f"v_cmp_eq_u32 {sr(sM[0],2)}, 1, v{t1}")
    e(f"v_cmp_ne_u32 {sr(sM[1],2)}, 0, v{bl}")
    e(f"v_mov_b32 v{t0}, s{sT[0]}"); e(f"v_mov_b32 v{t1}, s{sT[1]}")
    e(f"v_mov_b32 v{t2}, s{sT[2]}"); e(f"v_mov_b32 v{t3}, s{sT[3]}")
    e(f"v_cndmask_b32 v{vTa}, v{t0}, v{t2}, {sr(sM[0],2)}")
    e(f"v_cndmask_b32 v{vTb}, v{t1}, v{t3}, {sr(sM[0],2)}")
    e(f"v_cndmask_b32 v{vTc}, v{t0}, v{t2}, {sr(sM[1],2)}")
    e(f"v_cndmask_b32 v{vTd}, v{t1}, v{t3}, {sr(sM[1],2)}")
    ml = xl; op = xl + 2
    e(f"s_mov_b32 s{s_cnt}, {spin}")
    g.lab("L_pml")
    e(f"global_load_dwordx2 {vr(ml,2)}, v{vMp}, {sr(sWS,2)} sc1")
    e("s_waitcnt vmcnt(0)")
    e(f"v_xor_b32 v{ml}, v{ml}, v{vTc}")
    e(f"v_xor_b32 v{ml+1}, v{ml+1}, v{vTd}")
    e(f"v_or_b32 v{t0}, v{ml}, v{ml+1}")
    poll_tail(t0, "L_pml")
    e(f"global_load_dwordx2 {vr(op,2)}, v{vAp}, {sr(sWS,2)} sc1")
    e(f"v_mov_b32 v{t0}, v{ml}")
    red8("v_max_f32", [t0])
    e(f"v_sub_f32 v{t0}, v{ml}, v{t0}")
    e(f"v_mul_f32 v{t0}, s{s_l2e}, v{t0}")
    e(f"v_exp_f32 v{t0}, v{t0}")
    e("s_nop 0")
    e(f"v_mul_f32 v{t1}, v{t0}, v{ml+1}")
    red8("v_add_f32", [t1])
    e(f"v_rcp_f32 v{t1}, v{t1}")
    e("s_nop 0")
    e(f"v_mul_f32 v{t3}, v{t0}, v{t1}")
    e(f"s_mov_b32 s{s_cnt}, {spin}")
    e("s_branch L_pa2")
    g.lab("L_pa")
    e(f"global_load_dwordx2 {vr(op,2)}, v{vAp}, {sr(sWS,2)} sc1")
    g.lab("L_pa2")
    e("s_waitcnt vmcnt(0)")
    e(f"v_xor_b32 v{op}, v{op}, v{vTa}")
    e(f"v_xor_b32 v{op+1}, v{op+1}, v{vTb}")
    e(f"v_or_b32 v{t0}, v{op}, v{op+1}")
    poll_tail(t0, "L_pa")
    stamp()
    e(f"v_mul_f32 v{op}, v{op}, v{t3}")
    e(f"v_mul_f32 v{op+1}, v{op+1}, v{t3}")
    red8("v_add_f32", [op, op+1])
    afrag(A0, op); afrag(A1, op+1)
    e(f"s_lshl_b32 s{s_t0}, s{s_wv}, 10")
    e(f"v_lshl_add_u32 v{vL}, v{lane}, 4, s{s_t0}")
    mfma(D0, A0, wo, None)
    mfma(D0, A1, wo+4, D0)
    e("s_nop 7")
    e(f"ds_write_b128 v{vL}, {vr(D0,4)} offset:{L_SP}")
    e("s_waitcnt lgkmcnt(0)")
    e("s_barrier")
    stamp()
    dump_stamps(Kf)
    e("s_endpgm")

    g.lab("L_comm")
    nst[0] = 1 if diag else 0
    g.reset(common_end)
    vW2a, vW2b, vB1a, vB1b, vFo, vB2o, vSc, vl16, vHs, vQp, vHpa, vHpb, vTa, vTb, vIn = [g.v() for _ in range(15)]
    xo, b2v, gv = g.v(), g.v(), g.v()
    b1a = g.v(2); b1b = g.v()
    w2 = g.v(24); P = g.v(64); hp = g.v(8); AF = g.v(24); D = g.v(4)
    s_fr = 13
    e(f"s_mul_i32 s{s_fr}, s{s_h}, 48")
    e(f"s_mul_i32 s{s_t0}, s{s_j1}, 24")
    e(f"s_add_u32 s{s_fr}, s{s_fr}, s{s_t0}")
    e(f"v_lshlrev_b32 v{t1}, 4, v{m}")
    e(f"s_lshl_b32 s{s_t0}, s{s_fr}, 10")
    e(f"s_lshl_b32 s{s_t1}, s{s_cb}, 8")
    e(f"s_add_u32 s{s_t0}, s{s_t0}, s{s_t1}")
    e(f"v_lshl_add_u32 v{vW2a}, v{kg}, 12, v{t1}")
    e(f"v_add_u32 v{vW2a}, s{s_t0}, v{vW2a}")
    e(f"s_add_u32 s{s_t0}, s{s_t0}, {16*1024}")
    e(f"v_lshl_add_u32 v{vW2b}, v{kg}, 11, v{t1}")
    e(f"v_add_u32 v{vW2b}, s{s_t0}, v{vW2b}")
    e(f"s_lshl_b32 s{s_t0}, s{s_fr}, 1")
    e(f"v_lshl_add_u32 v{vB1a}, v{kg}, 3, s{s_t0}")
    e(f"s_add_u32 s{s_t0}, s{s_t0}, 32")
    e(f"v_lshl_add_u32 v{vB1b}, v{kg}, 2, s{s_t0}")
    e(f"v_and_b32 v{t0}, 1, v{kg}")
    e(f"v_lshlrev_b32 v{t0}, 2, v{t0}")
    e(f"v_and_or_b32 v{t0}, v{kg}, 2, v{t0}")
    e(f"s_lshl_b32 s{s_t0}, s2, 3")
    e(f"v_add_u32 v{vFo}, s{s_t0}, v{t0}")
    e(f"v_and_b32 v{vB2o}, 0x3ff, v{vFo}")
    e("s_waitcnt lgkmcnt(0)")
    e(f"s_load_dword s{s_E}, {sr(sWS,2)}, 0")
    e(f"s_mov_b32 s{srdA}, s{sW2}")
    e(f"s_mov_b32 s{srdA+1}, s{sW2+1}")
    e(f"s_mov_b32 s{srdA+2}, {1376*1024}")
    e(f"s_mov_b32 s{srdA+3}, 0x20000")
    e(f"s_mov_b32 s{srdB}, s{sB1}")
    e(f"s_mov_b32 s{srdB+1}, s{sB1+1}")
    e(f"s_mov_b32 s{srdB+2}, 2752")
    e(f"s_mov_b32 s{srdB+3}, 0x20000")
    for t in range(4):
        e(f"buffer_load_dwordx4 {vr(w2+4*t,4)}, v{vW2a}, {sr(srdA,4)}, 0 offen offset:{t*1024}{NT}")
    for t in range(2):
        e(f"buffer_load_dwordx4 {vr(w2+16+4*t,4)}, v{vW2b}, {sr(srdA,4)}, 0 offen offset:{t*1024}{NT}")
    e(f"buffer_load_dwordx2 {vr(b1a,2)}, v{vB1a}, {sr(srdB,4)}, 0 offen")
    e(f"buffer_load_dword v{b1b}, v{vB1b}, {sr(srdB,4)}, 0 offen")
    e(f"global_load_ushort v{xo}, v{vFo}, {sr(sX,2)}")
    e(f"global_load_ushort v{b2v}, v{vB2o}, {sr(sB2,2)}")
    masks_and_tags()
    e(f"v_lshlrev_b32 v{vl16}, 4, v{lane}")
    e(f"v_lshrrev_b32 v{t0}, 1, v{kg}")
    e(f"v_and_b32 v{t1}, 1, v{kg}")
    e(f"v_lshl_add_u32 v{t2}, v{m}, 1, v{t1}")
    e(f"v_lshl_add_u32 v{vSc}, v{t0}, 7, v{t2}")
    e(f"v_lshlrev_b32 v{vSc}, 10, v{vSc}")
    e(f"s_lshl_b32 s{s_t0}, s{s_cb}, 15")
    e(f"s_lshl_b32 s{s_t1}, s{s_h}, 5")
    e(f"s_add_u32 s{s_t0}, s{s_t0}, s{s_t1}")
    e(f"s_lshl_b32 s{s_t1}, s{s_j1}, 4")
    e(f"s_add_u32 s{s_t0}, s{s_t0}, s{s_t1}")
    e(f"s_add_u32 s{s_t0}, s{s_t0}, {FIN}")
    e(f"v_add_u32 v{vSc}, s{s_t0}, v{vSc}")
    e(f"v_lshlrev_b32 v{vHs}, 4, v{t2}")
    e(f"v_lshl_add_u32 v{vHs}, v{t0}, 8, v{vHs}")
    e(f"s_lshl_b32 s{s_t0}, s{s_wgi}, 9")
    e(f"s_add_u32 s{s_t0}, s{s_t0}, {HBASE}")
    e(f"v_add_u32 v{vHs}, s{s_t0}, v{vHs}")
    vQw = g.v()
    e(f"v_lshlrev_b32 v{vQw}, 3, v{t2}")
    e(f"v_lshl_add_u32 v{vQw}, v{t0}, 8, v{vQw}")
    e(f"s_lshl_b32 s{s_t0}, s{s_h}, 13")
    e(f"s_add_u32 s{s_t0}, s{s_t0}, {QBASE+4096}")
    e(f"v_add_u32 v{vQp}, s{s_t0}, v{vl16}")
    e(f"v_and_b32 v{t0}, 7, v{m}")
    e(f"v_lshrrev_b32 v{t2}, 3, v{m}")
    e(f"v_lshlrev_b32 v{t2}, 8, v{t2}")
    e(f"v_lshl_add_u32 v{t2}, v{t0}, 9, v{t2}")
    e(f"s_lshl_b32 s{s_t0}, s{s_h}, 12")
    e(f"s_mul_i32 s{s_t1}, s{s_j1}, 96")
    e(f"s_add_u32 s{s_t0}, s{s_t0}, s{s_t1}")
    e(f"s_add_u32 s{s_t0}, s{s_t0}, {HBASE}")
    e(f"v_add_u32 v{t2}, s{s_t0}, v{t2}")
    e(f"v_lshl_add_u32 v{vHpa}, v{kg}, 4, v{t2}")
    e(f"v_lshl_add_u32 v{vHpb}, v{kg}, 3, v{t2}")
    e(f"v_cmp_eq_u32 {sr(sM[0],2)}, 1, v{t1}")
    e(f"v_mov_b32 v{t0}, s{sT[0]}"); e(f"v_mov_b32 v{t1}, s{sT[1]}")
    e(f"v_mov_b32 v{t2}, s{sT[2]}"); e(f"v_mov_b32 v{t3}, s{sT[3]}")
    e(f"v_cndmask_b32 v{vTa}, v{t0}, v{t2}, {sr(sM[0],2)}")
    e(f"v_cndmask_b32 v{vTb}, v{t1}, v{t3}, {sr(sM[0],2)}")
    e(f"s_lshl_b32 s{s_t0}, s2, 10")
    e(f"s_add_u32 s{s_t0}, s{s_t0}, {FIN}")
    e(f"v_add_u32 v{vIn}, s{s_t0}, v{vl16}")
    vQs = g.v()
    e(f"s_lshl_b32 s{s_t0}, s{s_wgi}, 10")
    e(f"s_add_u32 s{s_t0}, s{s_t0}, {QBASE}")
    e(f"v_add_u32 v{vQs}, s{s_t0}, v{vl16}")
    e("s_barrier")
    stamp()
    def sum_n(base, n):
        step = 1
        while step < n:
            for i in range(0, n, 2*step):
                for r in range(4):
                    e(f"v_add_f32 v{base+4*i+r}, v{base+4*i+r}, v{base+4*(i+step)+r}")
            step *= 2
    for i in range(8): e(f"ds_read_b128 {vr(P+4*i,4)}, v{vl16} offset:{L_QP+2048*i}")
    for i in range(8): e(f"ds_read_b128 {vr(P+32+4*i,4)}, v{vl16} offset:{L_QP+2048*i+1024}")
    e("s_waitcnt lgkmcnt(0)")
    sum_n(P, 8); tag4(P)
    e(f"global_store_dwordx4 v{vQs}, {vr(P,4)}, {sr(sWS,2)} sc1")
    sum_n(P+32, 8); tag4(P+32)
    e("s_mov_b32 exec_lo, 0x003f003f"); e("s_mov_b32 exec_hi, 0x003f003f")
    e(f"global_store_dwordx4 v{vHs}, {vr(P+32,4)}, {sr(sWS,2)} sc1")
    e("s_mov_b64 exec, -1")
    stamp()
    e(f"s_mov_b32 s{s_cnt}, {spin}")
    e("s_nop 1")
    g.lab("L_pq")
    for p in range(8):
        e(f"global_load_dwordx4 {vr(P+4*p,4)}, v{vQp}, {sr(sWS,2)} offset:{p*1024-4096} sc1")
    e(f"global_load_dwordx4 {vr(hp,4)}, v{vHpa}, {sr(sWS,2)} sc1")
    e(f"global_load_dwordx2 {vr(hp+4,2)}, v{vHpb}, {sr(sWS,2)} offset:64 sc1")
    e("s_waitcnt vmcnt(0)")
    for p in range(8):
        for r in range(4): e(f"v_xor_b32 v{P+4*p+r}, s{sT[r]}, v{P+4*p+r}")
    for r in range(4): e(f"v_xor_b32 v{hp+r}, s{sT[r]}, v{hp+r}")
    e(f"v_xor_b32 v{hp+4}, v{vTa}, v{hp+4}")
    e(f"v_xor_b32 v{hp+5}, v{vTb}, v{hp+5}")
    e(f"v_or_b32 v{t0}, v{hp+4}, v{hp+5}")
    for i in range(0, 4, 2): e(f"v_or3_b32 v{t0}, v{t0}, v{hp+i}, v{hp+i+1}")
    for i in range(0, 32, 2): e(f"v_or3_b32 v{t0}, v{t0}, v{P+i}, v{P+i+1}")
    poll_tail(t0, "L_pq")
    stamp()
    sum_n(P, 8)
    e(f"v_cvt_pk_bf16_f32 v{P}, v{P}, v{P+1}")
    e(f"v_cvt_pk_bf16_f32 v{P+1}, v{P+2}, v{P+3}")
    e(f"ds_write_b64 v{vQw}, {vr(P,2)} offset:{L_Q}")
    e("s_waitcnt lgkmcnt(0)")
    e("s_barrier")
    red8("v_add_f32", [hp+i for i in range(6)])
    for i in range(0, 6, 2): rbf2(hp+i, hp+i+1, t0)
    bsrc = [b1a, b1a+1, b1b]
    for i in range(3):
        e(f"v_lshlrev_b32 v{t0}, 16, v{bsrc[i]}")
        e(f"v_and_b32 v{t1}, s{s_hi}, v{bsrc[i]}")
        e(f"v_add_f32 v{hp+2*i}, v{hp+2*i}, v{t0}")
        e(f"v_add_f32 v{hp+2*i+1}, v{hp+2*i+1}, v{t1}")
    for i in range(0, 6, 2): rbf2(hp+i, hp+i+1, t0)
    for i in range(6): e(f"v_max_f32 v{hp+i}, 0, v{hp+i}")
    for i in range(6): e(f"v_mul_f32 v{hp+i}, v{hp+i}, v{hp+i}")
    for i in range(6): afrag(AF+4*i, hp+i)
    e("s_nop 1")
    for i in range(6): mfma(D, AF+4*i, w2+4*i, None if i == 0 else D)
    e("s_nop 7")
    tag4(D)
    e(f"global_store_dwordx4 v{vSc}, {vr(D,4)}, {sr(sWS,2)} sc1")
    stamp()
    e(f"v_mov_b32 v{t0}, 0")
    e("s_barrier")
    for i in range(4): e(f"ds_read_b128 {vr(P+4*i,4)}, v{t0} offset:{L_ML+16*i}")
    e("s_waitcnt lgkmcnt(0)")
    for b in range(2):
        B = P + 8*b
        e(f"v_max3_f32 v{D+2*b}, v{B}, v{B+2}, v{B+4}")
        e(f"v_max_f32 v{D+2*b}, v{D+2*b}, v{B+6}")
        for i in range(4): e(f"v_sub_f32 v{B+2*i}, v{B+2*i}, v{D+2*b}")
        for i in range(4): e(f"v_mul_f32 v{B+2*i}, s{s_l2e}, v{B+2*i}")
        for i in range(4): e(f"v_exp_f32 v{B+2*i}, v{B+2*i}")
        e("s_nop 0")
        e(f"v_mul_f32 v{D+2*b+1}, v{B}, v{B+1}")
        for i in range(1, 4): e(f"v_fmac_f32 v{D+2*b+1}, v{B+2*i}, v{B+2*i+1}")
    tag4(D)
    e(f"s_lshl_b32 s{s_t0}, s{s_wgi}, 4")
    e(f"s_add_u32 s{s_t0}, s{s_t0}, {MLBASE}")
    e(f"v_mov_b32 v{t0}, s{s_t0}")
    e("s_mov_b64 exec, 1")
    e(f"global_store_dwordx4 v{t0}, {vr(D,4)}, {sr(sWS,2)} sc1")
    e("s_mov_b64 exec, -1")
    e(f"v_and_b32 v{t1}, 31, v{lane}")
    e(f"v_lshlrev_b32 v{t1}, 4, v{t1}")
    e(f"v_lshrrev_b32 v{t2}, 5, v{lane}")
    e(f"v_lshl_add_u32 v{t1}, v{t2}, 11, v{t1}")
    e(f"v_add_u32 v{vQs}, {ABASE-QBASE}, v{vQs}")
    e("s_barrier")
    stamp()
    for i in range(4): e(f"ds_read_b128 {vr(P+4*i,4)}, v{t1} offset:{L_OP+512*i}")
    e("s_waitcnt lgkmcnt(0)")
    sum_n(P, 4); tag4(P)
    e(f"global_store_dwordx4 v{vQs}, {vr(P,4)}, {sr(sWS,2)} sc1")
    stamp()
    def inbox(lab, off):
        Q = P + 8
        e(f"s_mov_b32 s{s_cnt}, {spin}")
        g.lab(lab)
        e(f"global_load_dwordx4 {vr(Q,4)}, v{vIn}, {sr(sWS,2)} sc1")
        e("s_waitcnt vmcnt(0)")
        for r in range(4): e(f"v_xor_b32 v{Q+r}, s{sT[r]}, v{Q+r}")
        e(f"v_or_b32 v{t0}, v{Q}, v{Q+1}")
        e(f"v_or3_b32 v{t0}, v{t0}, v{Q+2}, v{Q+3}")
        poll_tail(t0, lab)
        stamp()
        e(f"v_permlane32_swap_b32 v{Q}, v{Q+1}")
        e(f"v_permlane32_swap_b32 v{Q+2}, v{Q+3}")
        e(f"v_add_f32 v{Q}, v{Q}, v{Q+1}")
        e(f"v_add_f32 v{Q+2}, v{Q+2}, v{Q+3}")
        e("s_nop 1")
        e(f"v_permlane16_swap_b32 v{Q}, v{Q+2}")
        e(f"v_add_f32 v{Q}, v{Q}, v{Q+2}")
        for ctl in (X1, X2, HM, RM):
            e("s_nop 1"); dpp("v_add_f32", Q, Q, Q, ctl)
        rbf(Q, Q)
        return Q
    Q = inbox("L_pf", 0)
    e(f"v_lshlrev_b32 v{b2v}, 16, v{b2v}")
    e(f"v_add_f32 v{Q}, v{Q}, v{b2v}")
    rbf(Q, Q)
    e(f"v_mul_f32 v{t0}, s{s_l2e}, v{Q}")
    e(f"v_exp_f32 v{t0}, -v{t0}")
    e("s_nop 0")
    e(f"v_add_f32 v{t0}, 1.0, v{t0}")
    e(f"v_rcp_f32 v{t0}, v{t0}")
    e("s_nop 0")
    e(f"v_mul_f32 v{gv}, v{Q}, v{t0}")
    rbf(gv, gv)
    e(f"v_lshlrev_b32 v{xo}, 16, v{xo}")
    e(f"v_add_u32 v{vSc}, {BIN-FIN}, v{vSc}")
    e(f"v_add_u32 v{vIn}, {BIN-FIN}, v{vIn}")
    e("s_barrier")
    stamp()
    for i in range(8): e(f"ds_read_b128 {vr(P+16+4*i,4)}, v{vl16} offset:{L_SP+1024*i}")
    e("s_waitcnt lgkmcnt(0)")
    sum_n(P+16, 8); tag4(P+16)
    e(f"global_store_dwordx4 v{vSc}, {vr(P+16,4)}, {sr(sWS,2)} sc1")
    stamp()
    Q = inbox("L_pb", 0)
    e(f"v_mul_f32 v{Q}, v{Q}, v{gv}")
    rbf(Q, Q)
    e(f"v_add_f32 v{Q}, v{Q}, v{xo}")
    e(f"v_cvt_pk_bf16_f32 v{Q}, v{Q}, v{Q}")
    e("s_mov_b32 exec_lo, 0x00010001"); e("s_mov_b32 exec_hi, 0x00010001")
    e(f"global_store_short v{vFo}, v{Q}, {sr(sOUT,2)}")
    e("s_mov_b64 exec, -1")
    e("s_cmp_lg_u32 s2, 0")
    e("s_cbranch_scc1 L_noep")
    e(f"s_add_u32 s{s_t0}, s{s_E}, 1")
    e(f"v_mov_b32 v{t0}, s{s_t0}")
    e(f"v_mov_b32 v{t1}, 0")
    e("s_mov_b64 exec, 1")
    e(f"global_store_dword v{t1}, v{t0}, {sr(sWS,2)}")
    e("s_mov_b64 exec, -1")
    g.lab("L_noep")
    stamp()
    dump_stamps(P)
    g.lab("L_end")
    e("s_endpgm")

    nv = (g.maxv + 7) // 8 * 8
    hdr = open(os.path.join(os.path.dirname(os.path.abspath(__file__)), "..", "cdna_kernels", NAME + ".s.ref")).read().split("\n")
    top = [l for l in hdr if l.startswith(";") and "@launch" not in l and "Override" not in l and "grid=ceil" not in l]
    out = top + [f"; @launch grid=(256,1,1) block=(576,1,1) lds={LDS_BYTES}",
        '.amdgcn_target "amdgcn-amd-amdhsa--gfx950"', ".text", f".globl {NAME}_kernel", ".p2align 8",
        f".type {NAME}_kernel,@function", f"{NAME}_kernel:"] + g.L + [
        '.section .rodata,"a"', ".p2align 6", f".amdhsa_kernel {NAME}_kernel",
        f"  .amdhsa_next_free_vgpr {nv}", "  .amdhsa_next_free_sgpr 102", f"  .amdhsa_accum_offset {nv}",
        "  .amdhsa_group_segment_fixed_size 0", "  .amdhsa_kernarg_size 104", "  .amdhsa_user_sgpr_count 2",
        "  .amdhsa_user_sgpr_kernarg_segment_ptr 1", "  .amdhsa_system_sgpr_workgroup_id_x 1", ".end_amdhsa_kernel", ""]
    return "\n".join(out)

if __name__ == "__main__":
    import argparse
    ap = argparse.ArgumentParser()
    ap.add_argument("-o", default=None)
    ap.add_argument("--diag", action="store_true")
    ap.add_argument("--no-nt", action="store_true")
    a = ap.parse_args()
    txt = gen(diag=a.diag, nt=not a.no_nt)
    path = a.o or os.path.join(os.path.dirname(os.path.abspath(__file__)), "..", "cdna_kernels", NAME + ".s")
    open(path, "w").write(txt)
    print("wrote", path, len(txt.split("\n")), "lines")
```

```python
import sys, os
NAME = "recurrent_scan__sliding_block_cached__dense_activation_squared_relu__decode"

class G:
    def __init__(self):
        self.L = []; self.nv = 0; self.maxv = 0
    def e(self, s): self.L.append("    " + s)
    def lab(self, s): self.L.append(s + ":")
    def reset(self, n): self.nv = n
    def v(self, n=1, al=1):
        if n >= 4: al = max(al, 4) if n % 4 == 0 else max(al, 2)
        elif n >= 2: al = max(al, 2)
        self.nv = (self.nv + al - 1) // al * al
        r = self.nv; self.nv += n
        self.maxv = max(self.maxv, self.nv)
        return r

def vr(b, n): return f"v[{b}:{b+n-1}]"
def sr(b, n): return f"s[{b}:{b+n-1}]"

QBASE = 0x1000
HBASE = QBASE + 0x40000
ABASE = HBASE + 0x20000
MLBASE = ABASE + 0x40000
IDBASE = MLBASE + 0x1000
FIN = IDBASE + 0x1000
BIN = FIN + 0x40000
DIAG = 0x400000
L_Q = 0; L_FL = 512; L_ML = 640; L_OP = 1024; L_SP = 5120; SPS = 1088; L_K = 16384
NW = 10

SCALE = 0x3DB504F3
LOG2E = 0x3FB8AA3B
EPS = 0x3727C5AC

def gen(diag=False, fK="nt", fV="nt", fW="nt", kdma=True, bar0=True, fast=True, prio=True, pf=True, gate=True, vd=4, slp=1, spin=20000):
    g = G(); e = g.e
    fl = lambda f: (" " + f) if f else ""
    fK, fV, fW = fl(fK), fl(fV), fl(fW)
    sX, sK, sV, sWQ, sWO, sW1, sB1, sW2, sB2, sOUT, sWS = 16, 18, 20, 22, 24, 28, 30, 32, 34, 36, 40
    s_wv, s_h, s_j, s_t0, s_t1, s_E, s_cnt = 3, 4, 5, 6, 7, 8, 9
    s_j1, s_cb, s_wgi = 10, 11, 12
    sT = [44, 45, 46, 47]
    s_hi, s_scale, s_l2e, s_fast = 48, 49, 50, 51
    srdA, srdB, srdC = 52, 56, 60
    sM = [64, 66, 68, 70]
    sID = 64
    s_T, s_idw, s_ido = 26, 38, 27
    sG = 100
    ST0 = 72
    nst = [0]
    def stamp():
        if diag:
            e(f"s_memrealtime {sr(ST0+2*nst[0],2)}")
            nst[0] += 1
            assert nst[0] <= 14
    def dump_stamps(vt):
        if not diag: return
        e("s_mov_b64 exec, -1")
        e("s_waitcnt vmcnt(0) lgkmcnt(0)")
        e(f"s_getreg_b32 s{s_t0}, hwreg(HW_REG_XCC_ID)")
        e(f"s_getreg_b32 s{s_t1}, hwreg(HW_REG_HW_ID)")
        for i in range(14):
            src = f"s{ST0+2*i}" if i < nst[0] else "0"
            e(f"v_mov_b32 v{vt+i}, {src}")
        e(f"v_mov_b32 v{vt+14}, s{s_t0}")
        e(f"v_mov_b32 v{vt+15}, s{s_t1}")
        e(f"s_mul_i32 s{s_t0}, s2, {NW}")
        e(f"s_add_u32 s{s_t0}, s{s_t0}, s{s_wv}")
        e(f"s_lshl_b32 s{s_t0}, s{s_t0}, 6")
        e(f"s_add_u32 s{s_t0}, s{s_t0}, {DIAG}")
        e(f"v_mov_b32 v{vt+16}, s{s_t0}")
        e("s_mov_b64 exec, 1")
        for i in range(4):
            e(f"global_store_dwordx4 v{vt+16}, {vr(vt+4*i,4)}, {sr(sWS,2)} offset:{16*i}")
    def dpp(op, d, a, b, ctl):
        e(f"{op}_dpp v{d}, v{a}, v{b} {ctl} row_mask:0xf bank_mask:0xf")
    X1, X2, HM, RM = "quad_perm:[1,0,3,2]", "quad_perm:[2,3,0,1]", "row_half_mirror", "row_mirror"
    def red8(op, regs):
        for ctl in (X1, X2, HM):
            pad = max(0, 2 - (len(regs) - 1))
            if pad: e(f"s_nop {pad-1}")
            for r in regs: dpp(op, r, r, r, ctl)
    def redgrp(op, r, tmp):
        e(f"v_mov_b32 v{tmp}, v{r}"); e("s_nop 1")
        e(f"v_permlane16_swap_b32 v{r}, v{tmp}")
        e(f"{op} v{r}, v{r}, v{tmp}")
        e(f"v_mov_b32 v{tmp}, v{r}"); e("s_nop 1")
        e(f"v_permlane32_swap_b32 v{r}, v{tmp}")
        e(f"{op} v{r}, v{r}, v{tmp}")
    def rbf(d, a):
        e(f"v_cvt_pk_bf16_f32 v{d}, v{a}, v{a}")
        e(f"v_and_b32 v{d}, s{s_hi}, v{d}")
    def rbf2(a, b, tmp):
        e(f"v_cvt_pk_bf16_f32 v{tmp}, v{a}, v{b}")
        e(f"v_lshlrev_b32 v{a}, 16, v{tmp}")
        e(f"v_and_b32 v{b}, s{s_hi}, v{tmp}")
    def mfma(d, a, b, c):
        cc = "0" if c is None else vr(c, 4)
        e(f"v_mfma_f32_16x16x32_bf16 {vr(d,4)}, {vr(a,4)}, {vr(b,4)}, {cc}")
    def srd(d, p, n):
        e(f"s_mov_b32 s{d}, s{p}"); e(f"s_mov_b32 s{d+1}, s{p+1}")
        e(f"s_mov_b32 s{d+2}, {n}"); e(f"s_mov_b32 s{d+3}, 0x20000")

    g.reset(1)
    lane, m, kg = g.v(), g.v(), g.v()
    msk = g.v(4)
    vFF = g.v()
    t0, t1, t2, t3 = g.v(), g.v(), g.v(), g.v()
    bl, m16 = g.v(), g.v()
    common_end = g.nv
    e("s_cmp_ge_u32 s2, 256")
    e("s_cbranch_scc1 L_end")
    e(f"s_load_dwordx16 {sr(16,16)}, s[0:1], 0")
    e(f"s_load_dwordx8 {sr(32,8)}, s[0:1], 64")
    e(f"s_load_dwordx2 {sr(sWS,2)}, s[0:1], 96")
    stamp()
    e(f"v_lshrrev_b32 v{t0}, 6, v0")
    e(f"v_and_b32 v{lane}, 63, v0")
    e(f"v_readfirstlane_b32 s{s_wv}, v{t0}")
    e(f"v_and_b32 v{m}, 15, v0")
    e(f"v_bfe_u32 v{kg}, v0, 4, 2")
    e(f"s_lshr_b32 s{s_h}, s2, 6")
    e(f"s_lshl_b32 s{s_h}, s{s_h}, 3")
    e(f"s_and_b32 s{s_t0}, s2, 7")
    e(f"s_add_u32 s{s_h}, s{s_h}, s{s_t0}")
    e(f"s_bfe_u32 s{s_j}, s2, 0x30003")
    e(f"s_and_b32 s{s_j1}, s{s_j}, 1")
    e(f"s_lshr_b32 s{s_cb}, s{s_j}, 1")
    e(f"s_lshl_b32 s{s_wgi}, s{s_h}, 3")
    e(f"s_add_u32 s{s_wgi}, s{s_wgi}, s{s_j}")
    e(f"s_mov_b32 s{s_hi}, 0xffff0000")
    e(f"s_mov_b32 s{s_scale}, {SCALE:#x}")
    e(f"s_mov_b32 s{s_l2e}, {LOG2E:#x}")
    e(f"v_bfe_u32 v{bl}, v0, 3, 1")
    e(f"v_lshlrev_b32 v{bl}, 10, v{bl}")
    e(f"v_lshlrev_b32 v{m16}, 4, v{m}")
    e(f"s_cmp_ge_u32 s{s_wv}, 2")
    e("s_cbranch_scc1 L_stream")

    def masks_and_tags(tags=True):
        e(f"v_bfe_u32 v{t0}, v{m}, 1, 2")
        e(f"v_and_b32 v{t1}, 1, v{m}")
        e(f"v_lshlrev_b32 v{t1}, 4, v{t1}")
        e(f"v_mov_b32 v{t2}, 0xffff")
        e(f"v_lshlrev_b32 v{t1}, v{t1}, v{t2}")
        for i in range(4): e(f"v_cmp_eq_u32 {sr(sM[i],2)}, {i}, v{t0}")
        e(f"v_mov_b32 v{vFF}, 0xffffff00")
        for i in range(4): e(f"v_cndmask_b32 v{msk+i}, 0, v{t1}, {sr(sM[i],2)}")
        if tags: do_tags()
    def do_tags():
        e("s_waitcnt lgkmcnt(0)")
        e(f"s_mul_i32 s{s_t0}, s{s_E}, 0x9e3779b1")
        e(f"s_add_u32 s{s_t0}, s{s_t0}, 0x7f4a7c15")
        e(f"s_add_u32 s{sT[0]}, s{s_E}, 1")
        e(f"s_and_b32 s{sT[0]}, s{sT[0]}, 0xff")
        e(f"s_bfe_u32 s{sT[1]}, s{s_t0}, 0x80008")
        e(f"s_bfe_u32 s{sT[2]}, s{s_t0}, 0x80010")
        e(f"s_bfe_u32 s{sT[3]}, s{s_t0}, 0x80018")
        e(f"s_and_b32 s{s_T}, s{s_t0}, 0xffffff00")
        e(f"s_or_b32 s{s_T}, s{s_T}, s{sT[0]}")
        e(f"s_getreg_b32 s{s_t1}, hwreg(HW_REG_XCC_ID, 0, 4)")
        e(f"s_and_b32 s{s_idw}, s{s_T}, -16")
        e(f"s_or_b32 s{s_idw}, s{s_idw}, s{s_t1}")
        e(f"s_mov_b32 s{s_idw+1}, s{s_idw}")
        e(f"s_lshl_b32 s{s_ido}, s{s_h}, 7")
        e(f"s_add_u32 s{s_ido}, s{s_ido}, {IDBASE}")
    def id_issue():
        e(f"s_load_dwordx8 {sr(sID,8)}, {sr(sWS,2)}, s{s_ido} glc")
    def id_check():
        for i in range(4): e(f"s_xor_b64 {sr(sID+2*i,2)}, {sr(sID+2*i,2)}, {sr(s_idw,2)}")
        e(f"s_or_b64 {sr(sID,2)}, {sr(sID,2)}, {sr(sID+2,2)}")
        e(f"s_or_b64 {sr(sID+4,2)}, {sr(sID+4,2)}, {sr(sID+6,2)}")
        e(f"s_or_b64 {sr(sID,2)}, {sr(sID,2)}, {sr(sID+4,2)}")
        e(f"s_cselect_b32 s{s_fast}, 0, 1")
    def smem_gate(lab, base, shift, stride, off, tagi):
        if not gate: return
        e(f"s_lshl_b32 s{s_t0}, s{s_h}, {shift}")
        e(f"s_add_u32 s{s_t0}, s{s_t0}, {base+off}")
        e(f"s_add_u32 s{sG}, s{sWS}, s{s_t0}")
        e(f"s_addc_u32 s{sG+1}, s{sWS+1}, 0")
        e(f"s_movk_i32 s{s_t1}, 200")
        g.lab(lab)
        for p in range(8): e(f"s_load_dword s{sID+p}, {sr(sG,2)}, {p*stride} glc")
        e(f"s_sub_u32 s{s_t1}, s{s_t1}, 1")
        e(f"s_cbranch_scc1 {lab}_to")
        e("s_waitcnt lgkmcnt(0)")
        for p in range(8): e(f"s_xor_b32 s{sID+p}, s{sID+p}, s{sT[tagi]}")
        e(f"s_or_b64 {sr(sID,2)}, {sr(sID,2)}, {sr(sID+2,2)}")
        e(f"s_or_b64 {sr(sID+4,2)}, {sr(sID+4,2)}, {sr(sID+6,2)}")
        e(f"s_or_b64 {sr(sID,2)}, {sr(sID,2)}, {sr(sID+4,2)}")
        e(f"s_or_b32 s{sID}, s{sID}, s{sID+1}")
        e(f"s_and_b32 s{sID}, s{sID}, 0xff")
        e(f"s_cbranch_scc1 {lab}")
        g.lab(f"{lab}_to")
        e("s_waitcnt lgkmcnt(0)")
    def afrag(dst, val):
        e(f"v_cvt_pk_bf16_f32 v{dst+3}, v{val}, v{val}")
        for i in range(4): e(f"v_and_b32 v{dst+i}, v{msk+i}, v{dst+3}")
    def tag4(d):
        for i in range(4): e(f"v_and_or_b32 v{d+i}, v{d+i}, v{vFF}, s{sT[i]}")
    def poll_tail(acc, lab, sleep=0):
        e(f"v_and_b32 v{acc}, 0xff, v{acc}")
        e(f"v_cmp_ne_u32 vcc, 0, v{acc}")
        e(f"s_cbranch_vccz {lab}_ok")
        if sleep: e(f"s_sleep {sleep}")
        e(f"s_sub_u32 s{s_cnt}, s{s_cnt}, 1")
        e(f"s_cmp_lg_u32 s{s_cnt}, 0")
        e(f"s_cbranch_scc1 {lab}")
        g.lab(f"{lab}_ok")
    npub = [0]
    def publish(vaddr, d, slow=False, n4=4):
        if slow or not fast:
            e(f"global_store_dwordx{n4} v{vaddr}, {vr(d,n4)}, {sr(sWS,2)} sc1"); return
        n = npub[0]; npub[0] += 1
        e(f"s_cmp_eq_u32 s{s_fast}, 0")
        e(f"s_cbranch_scc1 L_ps{n}")
        e(f"global_store_dwordx{n4} v{vaddr}, {vr(d,n4)}, {sr(sWS,2)}")
        e(f"s_branch L_pd{n}")
        g.lab(f"L_ps{n}")
        e(f"global_store_dwordx{n4} v{vaddr}, {vr(d,n4)}, {sr(sWS,2)} sc1")
        g.lab(f"L_pd{n}")
    def sum_n(base, n):
        step = 1
        while step < n:
            for i in range(0, n, 2*step):
                for r in range(4):
                    e(f"v_add_f32 v{base+4*i+r}, v{base+4*i+r}, v{base+4*(i+step)+r}")
            step *= 2
    def tagpair(da, db, cond):
        e(f"v_mov_b32 v{t0}, s{sT[0]}"); e(f"v_mov_b32 v{t1}, s{sT[1]}")
        e(f"v_mov_b32 v{t2}, s{sT[2]}"); e(f"v_mov_b32 v{t3}, s{sT[3]}")
        e(f"v_cndmask_b32 v{da}, v{t0}, v{t2}, {sr(cond,2)}")
        e(f"v_cndmask_b32 v{db}, v{t1}, v{t3}, {sr(cond,2)}")

    vX, vXr, vW, vPub, vl16, c2, vPf = [g.v() for _ in range(7)]
    xd = g.v(8); xl = g.v(8); xr = g.v(8)
    W = g.v(64); AF = g.v(8); D = g.v(4)
    aux_end = g.nv
    s_str, s_off, s_lim = 13, 14, 15
    if prio: e("s_setprio 3")
    if pf:
        e(f"s_getpc_b64 {sr(sG,2)}")
        g.lab("L_pc")
        e(f"v_lshlrev_b32 v{vPf}, 7, v0")
        e(f"v_min_u32 v{vPf}, L_end-L_pc, v{vPf}")
        e(f"global_load_dword v{vPf}, v{vPf}, {sr(sG,2)}")
    e(f"v_lshlrev_b32 v{t0}, 2, v{lane}")
    e(f"v_mov_b32 v{t1}, 0")
    e(f"ds_write_b32 v{t0}, v{t1} offset:{L_FL}")
    e(f"s_movk_i32 s{s_str}, 2752")
    e(f"s_movk_i32 s{s_t1}, 96")
    e(f"s_cmp_eq_u32 s{s_wv}, 0")
    e(f"s_cmovk_i32 s{s_str}, 8192")
    e(f"s_cmovk_i32 s{s_t1}, 256")
    e(f"s_lshl_b32 s{srdA+2}, s{s_str}, 9")
    e(f"s_mul_i32 s{s_t1}, s{s_t1}, s{s_h}")
    e(f"s_mul_i32 s{s_lim}, s{s_h}, 6")
    e(f"s_sub_i32 s{s_lim}, 172, s{s_lim}")
    e(f"s_min_i32 s{s_lim}, s{s_lim}, 6")
    e(f"s_cmp_eq_u32 s{s_wv}, 0")
    e(f"s_cselect_b32 s{s_lim}, 16, s{s_lim}")
    e(f"s_mov_b32 s{srdA+3}, 0x20000")
    e(f"v_and_b32 v{t0}, 7, v0")
    e(f"v_lshl_add_u32 v{vX}, v{t0}, 5, v{bl}")
    e(f"v_lshl_add_u32 v{vX}, v{kg}, 8, v{vX}")
    e(f"s_lshl_b32 s{s_t0}, s{s_j}, 6")
    e(f"v_lshl_add_u32 v{t1}, v{kg}, 4, s{s_t0}")
    e(f"v_lshl_add_u32 v{vXr}, v{t1}, 1, v{bl}")
    e(f"v_mul_u32_u24 v{vW}, s{s_str}, v{t1}")
    e(f"v_add3_u32 v{vW}, v{vW}, v{m16}, s{s_t1}")
    e(f"v_cmp_gt_i32 vcc, s{s_lim}, v{m}")
    e(f"v_bfrev_b32 v{t2}, 1")
    e(f"s_mov_b32 s{s_off}, 0")
    e(f"s_cmp_eq_u32 s{s_wv}, 0")
    e(f"v_cndmask_b32 v{vW}, v{t2}, v{vW}, vcc")
    e("s_waitcnt lgkmcnt(0)")
    e(f"s_cselect_b32 s{srdA}, s{sWQ}, s{sW1}")
    e(f"s_cselect_b32 s{srdA+1}, s{sWQ+1}, s{sW1+1}")
    e(f"s_load_dword s{s_E}, {sr(sWS,2)}, 0")
    stamp()
    e(f"global_load_dwordx4 {vr(xd,4)}, v{vX}, {sr(sX,2)}")
    e(f"global_load_dwordx4 {vr(xd+4,4)}, v{vX}, {sr(sX,2)} offset:16")
    e(f"global_load_dwordx4 {vr(xr,4)}, v{vXr}, {sr(sX,2)}")
    e(f"global_load_dwordx4 {vr(xr+4,4)}, v{vXr}, {sr(sX,2)} offset:16")
    for t in range(16):
        e(f"buffer_load_dwordx4 {vr(W+4*t,4)}, v{vW}, {sr(srdA,4)}, s{s_off} offen{fW}")
        if t < 15: e(f"s_add_u32 s{s_off}, s{s_off}, s{s_str}")
    e("s_barrier")
    stamp()
    e(f"v_lshlrev_b32 v{vl16}, 4, v{lane}")
    e(f"v_and_b32 v{t1}, 1, v{kg}")
    e(f"v_lshl_add_u32 v{c2}, v{m}, 1, v{t1}")
    e(f"s_cmp_eq_u32 s{s_wv}, 0")
    e("s_cbranch_scc0 L_fx")
    vFo, vB2o, xo, b2v, gv, vIn, vQp, vQw = [g.v() for _ in range(8)]
    e(f"v_lshlrev_b32 v{t1}, 2, v{t1}")
    e(f"v_and_or_b32 v{t1}, v{kg}, 2, v{t1}")
    e(f"s_lshl_b32 s{s_t0}, s2, 3")
    e(f"v_add_u32 v{vFo}, s{s_t0}, v{t1}")
    e(f"v_and_b32 v{vB2o}, 0x3ff, v{vFo}")
    e(f"s_lshl_b32 s{s_t0}, s{s_wgi}, 10")
    e(f"s_add_u32 s{s_t0}, s{s_t0}, {QBASE}")
    e(f"v_add_u32 v{vPub}, s{s_t0}, v{vl16}")
    e("s_branch L_ln")
    g.reset(aux_end)
    vW2a, vW2b, vB1a, vB1b, vSc, vHpa, vHpb, vTa, vTb, b1b = [g.v() for _ in range(10)]
    b1a = g.v(2); w2 = g.v(24)
    fTa, fTb = vTa, vTb
    s_fr = 43
    g.lab("L_fx")
    e(f"s_mul_i32 s{s_fr}, s{s_h}, 48")
    e(f"s_mul_i32 s{s_t0}, s{s_j1}, 24")
    e(f"s_add_u32 s{s_fr}, s{s_fr}, s{s_t0}")
    e(f"s_lshl_b32 s{s_t0}, s{s_fr}, 10")
    e(f"s_lshl_b32 s{s_t1}, s{s_cb}, 8")
    e(f"s_add_u32 s{s_t0}, s{s_t0}, s{s_t1}")
    e(f"v_lshl_add_u32 v{vW2a}, v{kg}, 12, v{m16}")
    e(f"v_add_u32 v{vW2a}, s{s_t0}, v{vW2a}")
    e(f"s_add_u32 s{s_t0}, s{s_t0}, {16*1024}")
    e(f"v_lshl_add_u32 v{vW2b}, v{kg}, 11, v{m16}")
    e(f"v_add_u32 v{vW2b}, s{s_t0}, v{vW2b}")
    e(f"s_lshl_b32 s{s_t0}, s{s_fr}, 1")
    e(f"v_lshl_add_u32 v{vB1a}, v{kg}, 3, s{s_t0}")
    e(f"s_add_u32 s{s_t0}, s{s_t0}, 32")
    e(f"v_lshl_add_u32 v{vB1b}, v{kg}, 2, s{s_t0}")
    srd(srdB, sW2, 1376*1024); srd(srdC, sB1, 2752)
    e(f"v_lshrrev_b32 v{t0}, 1, v{kg}")
    e(f"v_lshlrev_b32 v{vPub}, 4, v{c2}")
    e(f"v_lshl_add_u32 v{vPub}, v{t0}, 8, v{vPub}")
    e(f"s_lshl_b32 s{s_t0}, s{s_wgi}, 9")
    e(f"s_add_u32 s{s_t0}, s{s_t0}, {HBASE}")
    e(f"v_add_u32 v{vPub}, s{s_t0}, v{vPub}")
    g.lab("L_ln")
    masks_and_tags(False)
    e("s_waitcnt vmcnt(18)")
    stamp()
    for i in range(8):
        e(f"v_lshlrev_b32 v{xl+i}, 16, v{xd+i}")
        e(f"v_and_b32 v{xd+i}, s{s_hi}, v{xd+i}")
    e(f"v_add_f32 v{t0}, v{xl}, v{xd}")
    e(f"v_add_f32 v{t1}, v{xl+1}, v{xd+1}")
    for i in range(2, 8, 2):
        e(f"v_add_f32 v{t0}, v{t0}, v{xl+i}")
        e(f"v_add_f32 v{t1}, v{t1}, v{xl+i+1}")
        e(f"v_add_f32 v{t0}, v{t0}, v{xd+i}")
        e(f"v_add_f32 v{t1}, v{t1}, v{xd+i+1}")
    e(f"v_add_f32 v{t0}, v{t0}, v{t1}")
    red8("v_add_f32", [t0]); redgrp("v_add_f32", t0, t1)
    e(f"v_mul_f32 v{t0}, 0x3b000000, v{t0}")
    for i in range(8):
        e(f"v_sub_f32 v{xl+i}, v{xl+i}, v{t0}")
        e(f"v_sub_f32 v{xd+i}, v{xd+i}, v{t0}")
    e(f"v_mul_f32 v{t1}, v{xl}, v{xl}")
    e(f"v_mul_f32 v{t2}, v{xd}, v{xd}")
    for i in range(1, 8):
        e(f"v_fmac_f32 v{t1}, v{xl+i}, v{xl+i}")
        e(f"v_fmac_f32 v{t2}, v{xd+i}, v{xd+i}")
    e(f"v_add_f32 v{t1}, v{t1}, v{t2}")
    red8("v_add_f32", [t1]); redgrp("v_add_f32", t1, t2)
    e(f"v_mul_f32 v{t1}, 0x3b000000, v{t1}")
    rbf2(t0, t1, t2)
    e(f"v_add_f32 v{t1}, {EPS:#x}, v{t1}")
    rbf(t1, t1)
    e(f"v_sqrt_f32 v{t1}, v{t1}")
    e("s_nop 0")
    rbf(t1, t1)
    e(f"v_rcp_f32 v{t1}, v{t1}")
    e("s_waitcnt vmcnt(16)")
    for i in range(8):
        e(f"v_lshlrev_b32 v{xl+i}, 16, v{xr+i}")
        e(f"v_and_b32 v{xd+i}, s{s_hi}, v{xr+i}")
        e(f"v_sub_f32 v{xl+i}, v{xl+i}, v{t0}")
        e(f"v_sub_f32 v{xd+i}, v{xd+i}, v{t0}")
        rbf2(xl+i, xd+i, t2)
        e(f"v_mul_f32 v{xl+i}, v{xl+i}, v{t1}")
        e(f"v_mul_f32 v{xd+i}, v{xd+i}, v{t1}")
    stamp()
    val = lambda t: (xl if t % 2 == 0 else xd) + t // 2
    afrag(AF, val(0))
    for t in range(16):
        if t < 15: afrag(AF + 4*((t+1) % 2), val(t+1))
        else: e("s_nop 1")
        if t % 4 == 0: e(f"s_waitcnt vmcnt({12 - t})")
        mfma(D, AF + 4*(t % 2), W + 4*t, None if t == 0 else D)
    stamp()
    do_tags()
    tag4(D)
    e(f"s_mov_b32 s{s_cnt}, {spin}")
    e(f"s_cmp_eq_u32 s{s_wv}, 0")
    e("s_cbranch_scc0 L_f2")
    nst_split = nst[0]
    P = W
    publish(vPub, D, True)
    stamp()
    e(f"s_lshl_b32 s{s_t0}, s{s_j}, 2")
    e(f"s_add_u32 s{s_t0}, s{s_t0}, s{s_ido}")
    e(f"v_mov_b32 v{t0}, s{s_t0}")
    e(f"v_mov_b32 v{t1}, s{s_idw}")
    e("s_mov_b64 exec, 1")
    e(f"global_store_dword v{t0}, v{t1}, {sr(sWS,2)} sc1")
    e("s_mov_b64 exec, -1")
    e(f"global_load_ushort v{xo}, v{vFo}, {sr(sX,2)}")
    e(f"global_load_ushort v{b2v}, v{vB2o}, {sr(sB2,2)}")
    e(f"s_lshl_b32 s{s_t0}, s{s_h}, 13")
    e(f"s_add_u32 s{s_t0}, s{s_t0}, {QBASE+4096}")
    e(f"v_add_u32 v{vQp}, s{s_t0}, v{vl16}")
    e(f"v_lshrrev_b32 v{t1}, 1, v{kg}")
    e(f"v_lshlrev_b32 v{vQw}, 3, v{c2}")
    e(f"v_lshl_add_u32 v{vQw}, v{t1}, 8, v{vQw}")
    e(f"v_mov_b32 v{t3}, 0")
    e(f"v_mov_b32 v{t2}, 1")
    smem_gate("L_gq", QBASE, 13, 1024, 1020, 3)
    stamp()
    g.lab("L_pq")
    for p in range(8):
        e(f"global_load_dwordx4 {vr(P+4*p,4)}, v{vQp}, {sr(sWS,2)} offset:{p*1024-4096} sc1")
    for p in range(8):
        e(f"s_waitcnt vmcnt({7-p})")
        for r in range(4): e(f"v_xor_b32 v{P+4*p+r}, s{sT[r]}, v{P+4*p+r}")
        if p == 0: e(f"v_or_b32 v{t0}, v{P}, v{P+1}")
        else: e(f"v_or3_b32 v{t0}, v{t0}, v{P+4*p}, v{P+4*p+1}")
        e(f"v_or3_b32 v{t0}, v{t0}, v{P+4*p+2}, v{P+4*p+3}")
    poll_tail(t0, "L_pq")
    stamp()
    sum_n(P, 8)
    e(f"v_cvt_pk_bf16_f32 v{P}, v{P}, v{P+1}")
    e(f"v_cvt_pk_bf16_f32 v{P+1}, v{P+2}, v{P+3}")
    e(f"ds_write_b64 v{vQw}, {vr(P,2)} offset:{L_Q}")
    e("s_waitcnt lgkmcnt(0)")
    e("s_mov_b64 exec, 1")
    e(f"ds_write_b32 v{t3}, v{t2} offset:{L_FL}")
    e("s_mov_b64 exec, -1")
    id_issue()
    e(f"s_lshl_b32 s{s_t0}, s2, 10")
    e(f"s_add_u32 s{s_t0}, s{s_t0}, {FIN}")
    e(f"v_add_u32 v{vIn}, s{s_t0}, v{vl16}")
    vMr, vOr, vMs, vTa, vTb, vZ = vX, vXr, vW, vQp, vQw, vPf
    fw = xd; MLv = xl
    e(f"v_lshrrev_b32 v{vZ}, 5, v{lane}")
    e(f"v_lshlrev_b32 v{vMr}, 6, v{vZ}")
    e(f"v_and_b32 v{vOr}, 31, v{lane}")
    e(f"v_lshlrev_b32 v{vOr}, 4, v{vOr}")
    e(f"v_lshl_add_u32 v{vOr}, v{vZ}, 11, v{vOr}")
    e(f"s_lshl_b32 s{s_t0}, s{s_wgi}, 4")
    e(f"s_add_u32 s{s_t0}, s{s_t0}, {MLBASE}")
    e(f"v_lshl_add_u32 v{vMs}, v{vZ}, 3, s{s_t0}")
    e(f"v_add_u32 v{vPub}, {ABASE-QBASE}, v{vPub}")
    e("s_waitcnt lgkmcnt(0)")
    id_check()
    e(f"v_cmp_eq_u32 {sr(sM[0],2)}, 1, v{vZ}")
    tagpair(vTa, vTb, sM[0])
    e(f"v_mov_b32 v{vZ}, 0")
    e(f"s_mov_b32 s{s_cnt}, {spin*16}")
    g.lab("L_wm")
    for i in range(4): e(f"ds_read_b128 {vr(P+4*i,4)}, v{vMr} offset:{L_ML+16*i}")
    e("s_waitcnt lgkmcnt(0)")
    e(f"v_and_b32 v{t0}, v{P+2}, v{P+6}")
    e(f"v_and_b32 v{t1}, v{P+10}, v{P+14}")
    e(f"v_and_b32 v{t0}, v{t0}, v{t1}")
    e(f"v_cmp_ne_u32 vcc, 1, v{t0}")
    e("s_cbranch_vccz L_wm_ok")
    e("s_sleep 1")
    e(f"s_sub_u32 s{s_cnt}, s{s_cnt}, 1")
    e(f"s_cmp_lg_u32 s{s_cnt}, 0")
    e("s_cbranch_scc1 L_wm")
    g.lab("L_wm_ok")
    e(f"v_max3_f32 v{MLv}, v{P}, v{P+4}, v{P+8}")
    e(f"v_max_f32 v{MLv}, v{MLv}, v{P+12}")
    for i in range(4): e(f"v_sub_f32 v{fw+i}, v{P+4*i}, v{MLv}")
    for i in range(4): e(f"v_mul_f32 v{fw+i}, s{s_l2e}, v{fw+i}")
    for i in range(4): e(f"v_exp_f32 v{fw+i}, v{fw+i}")
    e(f"v_mul_f32 v{MLv+1}, v{fw}, v{P+1}")
    for i in range(1, 4): e(f"v_fmac_f32 v{MLv+1}, v{fw+i}, v{P+4*i+1}")
    e(f"v_and_or_b32 v{MLv}, v{MLv}, v{vFF}, v{vTa}")
    e(f"v_and_or_b32 v{MLv+1}, v{MLv+1}, v{vFF}, v{vTb}")
    e("s_mov_b32 exec_lo, 1"); e("s_mov_b32 exec_hi, 1")
    publish(vMs, MLv, n4=2)
    e("s_mov_b64 exec, -1")
    Q = P + 16
    e(f"global_load_dwordx4 {vr(Q,4)}, v{vIn}, {sr(sWS,2)} sc1")
    e(f"s_mov_b32 s{s_cnt}, {spin}")
    stamp()
    e("s_barrier")
    for i in range(4): e(f"ds_read_b128 {vr(P+4*i,4)}, v{vOr} offset:{L_OP+512*i}")
    e("s_waitcnt lgkmcnt(3)")
    for r in range(4): e(f"v_mul_f32 v{P+r}, v{P+r}, v{fw}")
    for i in range(1, 4):
        e(f"s_waitcnt lgkmcnt({3-i})")
        for r in range(4): e(f"v_fmac_f32 v{P+r}, v{P+4*i+r}, v{fw+i}")
    tag4(P)
    publish(vPub, P)
    stamp()
    def inbox(lab, pre=False):
        if pre:
            e("s_waitcnt vmcnt(1)")
            e(f"s_branch {lab}_c")
        g.lab(lab)
        e(f"global_load_dwordx4 {vr(Q,4)}, v{vIn}, {sr(sWS,2)} sc1")
        e("s_waitcnt vmcnt(0)")
        if pre: g.lab(f"{lab}_c")
        for r in range(4): e(f"v_xor_b32 v{Q+r}, s{sT[r]}, v{Q+r}")
        e(f"v_or_b32 v{t0}, v{Q}, v{Q+1}")
        e(f"v_or3_b32 v{t0}, v{t0}, v{Q+2}, v{Q+3}")
        poll_tail(t0, lab)
        stamp()
        e(f"v_permlane32_swap_b32 v{Q}, v{Q+1}")
        e(f"v_permlane32_swap_b32 v{Q+2}, v{Q+3}")
        e(f"v_add_f32 v{Q}, v{Q}, v{Q+1}")
        e(f"v_add_f32 v{Q+2}, v{Q+2}, v{Q+3}")
        e("s_nop 1")
        e(f"v_permlane16_swap_b32 v{Q}, v{Q+2}")
        e(f"v_add_f32 v{Q}, v{Q}, v{Q+2}")
        for ctl in (X1, X2, HM, RM):
            e("s_nop 1"); dpp("v_add_f32", Q, Q, Q, ctl)
        rbf(Q, Q)
    inbox("L_pf", True)
    e(f"v_lshlrev_b32 v{b2v}, 16, v{b2v}")
    e(f"v_add_f32 v{Q}, v{Q}, v{b2v}")
    rbf(Q, Q)
    e(f"v_mul_f32 v{t0}, s{s_l2e}, v{Q}")
    e(f"v_exp_f32 v{t0}, -v{t0}")
    e("s_nop 0")
    e(f"v_add_f32 v{t0}, 1.0, v{t0}")
    e(f"v_rcp_f32 v{t0}, v{t0}")
    e("s_nop 0")
    e(f"v_mul_f32 v{gv}, v{Q}, v{t0}")
    rbf(gv, gv)
    e(f"v_lshlrev_b32 v{xo}, 16, v{xo}")
    e(f"v_add_u32 v{vIn}, {BIN-FIN}, v{vIn}")
    e(f"s_mov_b32 s{s_cnt}, {spin}")
    e("s_barrier")
    inbox("L_pb")
    e(f"v_mul_f32 v{Q}, v{Q}, v{gv}")
    rbf(Q, Q)
    e(f"v_add_f32 v{Q}, v{Q}, v{xo}")
    e(f"v_cvt_pk_bf16_f32 v{Q}, v{Q}, v{Q}")
    e("s_mov_b32 exec_lo, 0x00010001"); e("s_mov_b32 exec_hi, 0x00010001")
    e(f"global_store_short v{vFo}, v{Q}, {sr(sOUT,2)}")
    e("s_cmp_lg_u32 s2, 0")
    e("s_cbranch_scc1 L_noep")
    e(f"s_add_u32 s{s_t0}, s{s_E}, 1")
    e(f"v_mov_b32 v{t0}, s{s_t0}")
    e("s_mov_b64 exec, 1")
    e(f"global_store_dword v{vZ}, v{t0}, {sr(sWS,2)}")
    g.lab("L_noep")
    stamp()
    dump_stamps(W+32)
    e("s_endpgm")
    g.lab("L_f2")
    nst[0] = nst_split
    hp = xl; AF6 = W
    vTa, vTb = fTa, fTb
    e("s_mov_b32 exec_lo, 0x003f003f"); e("s_mov_b32 exec_hi, 0x003f003f")
    publish(vPub, D, True)
    e("s_mov_b64 exec, -1")
    stamp()
    for t in range(4):
        e(f"buffer_load_dwordx4 {vr(w2+4*t,4)}, v{vW2a}, {sr(srdB,4)}, 0 offen offset:{t*1024}{fW}")
    for t in range(2):
        e(f"buffer_load_dwordx4 {vr(w2+16+4*t,4)}, v{vW2b}, {sr(srdB,4)}, 0 offen offset:{t*1024}{fW}")
    e(f"buffer_load_dwordx2 {vr(b1a,2)}, v{vB1a}, {sr(srdC,4)}, 0 offen")
    e(f"buffer_load_dword v{b1b}, v{vB1b}, {sr(srdC,4)}, 0 offen")
    e(f"v_and_b32 v{t0}, 7, v{m}")
    e(f"v_lshrrev_b32 v{t2}, 2, v{bl}")
    e(f"v_lshl_add_u32 v{t2}, v{t0}, 9, v{t2}")
    e(f"s_lshl_b32 s{s_t0}, s{s_h}, 12")
    e(f"s_mul_i32 s{s_t1}, s{s_j1}, 96")
    e(f"s_add_u32 s{s_t0}, s{s_t0}, s{s_t1}")
    e(f"s_add_u32 s{s_t0}, s{s_t0}, {HBASE}")
    e(f"v_add_u32 v{t2}, s{s_t0}, v{t2}")
    e(f"v_lshl_add_u32 v{vHpa}, v{kg}, 4, v{t2}")
    e(f"v_lshl_add_u32 v{vHpb}, v{kg}, 3, v{t2}")
    e(f"v_and_b32 v{t1}, 1, v{kg}")
    e(f"v_cmp_eq_u32 {sr(sM[0],2)}, 1, v{t1}")
    tagpair(vTa, vTb, sM[0])
    e(f"v_lshrrev_b32 v{t0}, 1, v{kg}")
    e(f"v_lshl_add_u32 v{vSc}, v{t0}, 7, v{c2}")
    e(f"v_lshlrev_b32 v{vSc}, 10, v{vSc}")
    e(f"s_lshl_b32 s{s_t0}, s{s_cb}, 15")
    e(f"s_lshl_b32 s{s_t1}, s{s_h}, 5")
    e(f"s_add_u32 s{s_t0}, s{s_t0}, s{s_t1}")
    e(f"s_lshl_b32 s{s_t1}, s{s_j1}, 4")
    e(f"s_add_u32 s{s_t0}, s{s_t0}, s{s_t1}")
    e(f"s_add_u32 s{s_t0}, s{s_t0}, {FIN}")
    e(f"v_add_u32 v{vSc}, s{s_t0}, v{vSc}")
    smem_gate("L_gh", HBASE, 12, 512, 256+188, 3)
    stamp()
    g.lab("L_ph")
    e(f"global_load_dwordx4 {vr(hp,4)}, v{vHpa}, {sr(sWS,2)} sc1")
    e(f"global_load_dwordx2 {vr(hp+4,2)}, v{vHpb}, {sr(sWS,2)} offset:64 sc1")
    e("s_waitcnt vmcnt(0)")
    for r in range(4): e(f"v_xor_b32 v{hp+r}, s{sT[r]}, v{hp+r}")
    e(f"v_xor_b32 v{hp+4}, v{vTa}, v{hp+4}")
    e(f"v_xor_b32 v{hp+5}, v{vTb}, v{hp+5}")
    e(f"v_or_b32 v{t0}, v{hp+4}, v{hp+5}")
    for i in range(0, 4, 2): e(f"v_or3_b32 v{t0}, v{t0}, v{hp+i}, v{hp+i+1}")
    poll_tail(t0, "L_ph")
    stamp()
    red8("v_add_f32", [hp+i for i in range(6)])
    for i in range(0, 6, 2): rbf2(hp+i, hp+i+1, t0)
    bsrc = [b1a, b1a+1, b1b]
    for i in range(3):
        e(f"v_lshlrev_b32 v{t0}, 16, v{bsrc[i]}")
        e(f"v_and_b32 v{t1}, s{s_hi}, v{bsrc[i]}")
        e(f"v_add_f32 v{hp+2*i}, v{hp+2*i}, v{t0}")
        e(f"v_add_f32 v{hp+2*i+1}, v{hp+2*i+1}, v{t1}")
    for i in range(0, 6, 2): rbf2(hp+i, hp+i+1, t0)
    for i in range(6): e(f"v_max_f32 v{hp+i}, 0, v{hp+i}")
    for i in range(6): e(f"v_mul_f32 v{hp+i}, v{hp+i}, v{hp+i}")
    for i in range(6): afrag(AF6+4*i, hp+i)
    e("s_nop 1")
    for i in range(6): mfma(D, AF6+4*i, w2+4*i, None if i == 0 else D)
    e("s_nop 7")
    tag4(D)
    e(f"global_store_dwordx4 v{vSc}, {vr(D,4)}, {sr(sWS,2)} sc1")
    stamp()
    dump_stamps(W+32)
    e("s_endpgm")

    g.lab("L_stream")
    nst[0] = 1 if diag else 0
    g.reset(common_end)
    vKa = g.v(4); vKr = g.v(4)
    vV, vWo, vQr, vOw, vAp, vMp, vMw, vL, vSr, vSc, vTa, vTb, vTc, vTd, vZ, fv = [g.v() for _ in range(16)]
    mw = g.v(4); lw = mw + 1
    ml = g.v(2); op = g.v(2)
    qf = g.v(16); Kf = g.v(32); Vf = g.v(32); wo = g.v(8)
    D0 = g.v(4); D1 = g.v(4)
    A0 = qf; A1 = qf + 4
    s_sw, s_bw, s_kv, sK2 = 13, 14, 15, 42
    e(f"s_sub_u32 s{s_sw}, s{s_wv}, 2")
    e(f"s_lshr_b32 s{s_bw}, s{s_sw}, 2")
    e(f"s_and_b32 s{s_t0}, s{s_sw}, 3")
    e(f"s_lshl_b32 s{s_t0}, s{s_t0}, 13")
    e(f"s_lshl_b32 s{s_kv}, s{s_bw}, 25")
    e(f"s_lshl_b32 s{s_t1}, s{s_h}, 20")
    e(f"s_add_u32 s{s_kv}, s{s_kv}, s{s_t1}")
    e(f"s_add_u32 s{s_kv}, s{s_kv}, s{s_t0}")
    e(f"s_lshl_b32 s{s_t1}, s{s_j}, 15")
    e(f"s_add_u32 s{s_kv}, s{s_kv}, s{s_t1}")
    e(f"s_add_u32 s{s_kv}, s{s_kv}, {3072*256}")
    e(f"v_xor_b32 v{t0}, v{m}, v{kg}")
    e(f"v_lshl_add_u32 v{t1}, v{kg}, 8, s{s_kv}")
    for i in range(4):
        if i: e(f"v_xor_b32 v{t2}, {4*i}, v{t0}")
        e(f"v_lshl_add_u32 v{vKa+i}, v{t2 if i else t0}, 4, v{t1}")
    e(f"s_lshl_b32 s{s_t0}, s{s_sw}, 13")
    e(f"s_add_u32 m0, s{s_t0}, {L_K}")
    e(f"s_add_u32 s{s_kv}, s{s_kv}, 4096")
    e(f"v_lshl_add_u32 v{vV}, v{kg}, 10, s{s_kv}")
    e(f"v_add_u32 v{vV}, v{vV}, v{m16}")
    e("s_waitcnt lgkmcnt(0)")
    e(f"s_add_u32 s{sK2}, s{sK}, 4096")
    e(f"s_addc_u32 s{sK2+1}, s{sK+1}, 0")
    e(f"s_load_dword s{s_E}, {sr(sWS,2)}, 0")
    e("s_barrier")
    stamp()
    def prep():
        masks_and_tags()
        e(f"s_lshl_b32 s{s_t0}, s{s_h}, 7")
        e(f"s_lshl_b32 s{s_t1}, s{s_j1}, 6")
        e(f"s_add_u32 s{s_t0}, s{s_t0}, s{s_t1}")
        e(f"s_lshl_b32 s{s_t1}, s{s_sw}, 3")
        e(f"s_add_u32 s{s_t0}, s{s_t0}, s{s_t1}")
        e(f"s_lshl_b32 s{s_t0}, s{s_t0}, 10")
        e(f"s_lshl_b32 s{s_t1}, s{s_cb}, 8")
        e(f"s_add_u32 s{s_t0}, s{s_t0}, s{s_t1}")
        e(f"v_lshl_add_u32 v{vWo}, v{kg}, 11, v{m16}")
        e(f"v_add_u32 v{vWo}, s{s_t0}, v{vWo}")
        e(f"s_lshl_b32 s{s_t0}, s{s_bw}, 8")
        e(f"v_lshl_add_u32 v{vQr}, v{kg}, 4, s{s_t0}")
        e(f"v_mov_b32 v{vZ}, 0")
        e(f"s_lshl_b32 s{s_t0}, s{s_sw}, 13")
        e(f"s_add_u32 s{s_t0}, s{s_t0}, {L_K}")
        e(f"v_lshl_add_u32 v{t1}, v{m}, 8, s{s_t0}")
        e(f"v_xor_b32 v{t0}, v{m}, v{kg}")
        for s in range(4):
            if s: e(f"v_xor_b32 v{t2}, {4*s}, v{t0}")
            e(f"v_lshl_add_u32 v{vKr+s}, v{t2 if s else t0}, 4, v{t1}")
        e(f"s_lshl_b32 s{s_t0}, s{s_sw}, 9")
        e(f"v_lshl_add_u32 v{vOw}, v{m}, 5, s{s_t0}")
        e(f"v_lshl_add_u32 v{vOw}, v{kg}, 4, v{vOw}")
        e(f"s_lshl_b32 s{s_t0}, s{s_sw}, 4")
        e(f"v_mov_b32 v{vMw}, s{s_t0}")
        e(f"v_and_b32 v{t0}, 7, v0")
        e(f"v_lshrrev_b32 v{t1}, 1, v{bl}")
        e(f"v_lshl_add_u32 v{vAp}, v{t0}, 10, v{t1}")
        e(f"v_lshl_add_u32 v{vAp}, v{kg}, 3, v{vAp}")
        e(f"s_lshl_b32 s{s_t0}, s{s_h}, 13")
        e(f"s_lshl_b32 s{s_t1}, s{s_j1}, 8")
        e(f"s_add_u32 s{s_t0}, s{s_t0}, s{s_t1}")
        e(f"s_lshl_b32 s{s_t1}, s{s_sw}, 5")
        e(f"s_add_u32 s{s_t0}, s{s_t0}, s{s_t1}")
        e(f"s_add_u32 s{s_t0}, s{s_t0}, {ABASE}")
        e(f"v_add_u32 v{vAp}, s{s_t0}, v{vAp}")
        e(f"v_lshrrev_b32 v{t1}, 7, v{bl}")
        e(f"v_lshl_add_u32 v{vMp}, v{t0}, 4, v{t1}")
        e(f"s_lshl_b32 s{s_t0}, s{s_h}, 7")
        e(f"s_add_u32 s{s_t0}, s{s_t0}, {MLBASE}")
        e(f"v_add_u32 v{vMp}, s{s_t0}, v{vMp}")
        e(f"s_mul_i32 s{s_t0}, s{s_sw}, {SPS}")
        e(f"v_lshl_add_u32 v{vL}, v{lane}, 4, s{s_t0}")
        e(f"v_mul_u32_u24 v{vSr}, {SPS}, v{t0}")
        e(f"v_lshrrev_b32 v{t1}, 3, v{lane}")
        e(f"s_lshl_b32 s{s_t0}, s{s_sw}, 3")
        e(f"v_add_u32 v{t1}, s{s_t0}, v{t1}")
        e(f"v_lshl_add_u32 v{vSr}, v{t1}, 4, v{vSr}")
        e(f"v_and_b32 v{t2}, 15, v{t1}")
        e(f"v_bfe_u32 v{t3}, v{t1}, 4, 1")
        e(f"v_lshl_add_u32 v{t2}, v{t2}, 1, v{t3}")
        e(f"v_lshrrev_b32 v{t3}, 5, v{t1}")
        e(f"v_lshl_add_u32 v{t2}, v{t3}, 7, v{t2}")
        e(f"s_lshl_b32 s{s_t0}, s{s_cb}, 15")
        e(f"s_lshl_b32 s{s_t1}, s{s_h}, 5")
        e(f"s_add_u32 s{s_t0}, s{s_t0}, s{s_t1}")
        e(f"s_lshl_b32 s{s_t1}, s{s_j1}, 4")
        e(f"s_add_u32 s{s_t0}, s{s_t0}, s{s_t1}")
        e(f"s_add_u32 s{s_t0}, s{s_t0}, {BIN}")
        e(f"v_lshl_add_u32 v{vSc}, v{t2}, 10, s{s_t0}")
        e(f"v_and_b32 v{t1}, 1, v{kg}")
        e(f"v_cmp_eq_u32 {sr(sM[0],2)}, 1, v{t1}")
        e(f"v_cmp_ne_u32 {sr(sM[1],2)}, 0, v{bl}")
        tagpair(vTa, vTb, sM[0])
        e(f"v_cndmask_b32 v{vTc}, v{t0}, v{t2}, {sr(sM[1],2)}")
        e(f"v_cndmask_b32 v{vTd}, v{t1}, v{t3}, {sr(sM[1],2)}")
        e(f"v_mov_b32 v{mw+2}, 1"); e(f"v_mov_b32 v{mw+3}, 1")
    kread_done = False
    for n in range(16):
        if n == vd: prep()
        if n >= vd: e(f"s_waitcnt vmcnt({vd-1})")
        if n == 4: e("s_add_u32 m0, m0, 4096"); e("s_nop 0")
        if n < 8:
            e(f"global_load_lds_dwordx4 v{vKa+n%4}, {sr(sK if n < 4 else sK2,2)} offset:{(n%4)*1024}{fK}")
        else:
            i = n - 8
            e(f"global_load_dwordx4 {vr(Vf+i*4,4)}, v{vV}, {sr(sV,2)} offset:{(i//4-1)*4096+(i%4)*256}{fV}")
            if n == 8: stamp()
        if n - (vd - 1) >= 8 and not kread_done:
            kread_done = True
            for u in range(2):
                for s in range(4): e(f"ds_read_b128 {vr(Kf+(u*4+s)*4,4)}, v{vKr+s} offset:{u*4096}")
    assert kread_done
    e(f"global_load_dwordx4 {vr(wo,4)}, v{vWo}, {sr(sWO,2)}{fW}")
    e(f"global_load_dwordx4 {vr(wo+4,4)}, v{vWo}, {sr(sWO,2)} offset:1024{fW}")
    stamp()
    e(f"s_mov_b32 s{s_cnt}, {spin*16}")
    g.lab("L_wq")
    e(f"ds_read_b32 v{fv}, v{vZ} offset:{L_FL}")
    for s in range(4): e(f"ds_read_b128 {vr(qf+4*s,4)}, v{vQr} offset:{L_Q+64*s}")
    e("s_waitcnt lgkmcnt(0)")
    e(f"v_cmp_ne_u32 vcc, 1, v{fv}")
    e("s_cbranch_vccz L_wq_ok")
    e("s_sleep 2")
    e(f"s_sub_u32 s{s_cnt}, s{s_cnt}, 1")
    e(f"s_cmp_lg_u32 s{s_cnt}, 0")
    e("s_cbranch_scc1 L_wq")
    g.lab("L_wq_ok")
    stamp()
    for s in range(4):
        mfma(D0, Kf+4*s, qf+4*s, None if s == 0 else D0)
        mfma(D1, Kf+16+4*s, qf+4*s, None if s == 0 else D1)
    e("s_nop 7")
    assert D1 == D0 + 4
    S = D0
    for i in range(0, 8, 2): rbf2(S+i, S+i+1, t0)
    for i in range(8): e(f"v_mul_f32 v{S+i}, s{s_scale}, v{S+i}")
    for i in range(0, 8, 2): rbf2(S+i, S+i+1, t0)
    e(f"v_max3_f32 v{mw}, v{S}, v{S+1}, v{S+2}")
    e(f"v_max3_f32 v{mw}, v{mw}, v{S+3}, v{S+4}")
    e(f"v_max3_f32 v{mw}, v{mw}, v{S+5}, v{S+6}")
    e(f"v_max_f32 v{mw}, v{mw}, v{S+7}")
    redgrp("v_max_f32", mw, t0)
    for i in range(8): e(f"v_sub_f32 v{S+i}, v{S+i}, v{mw}")
    for i in range(8): e(f"v_mul_f32 v{S+i}, s{s_l2e}, v{S+i}")
    for i in range(8): e(f"v_exp_f32 v{S+i}, v{S+i}")
    e(f"v_add_f32 v{lw}, v{S}, v{S+1}")
    for i in range(2, 8): e(f"v_add_f32 v{lw}, v{lw}, v{S+i}")
    redgrp("v_add_f32", lw, t0)
    e("s_mov_b64 exec, 1")
    e(f"ds_write_b128 v{vMw}, {vr(mw,4)} offset:{L_ML}")
    e("s_mov_b64 exec, -1")
    for i in range(8): afrag(Kf+4*i, S+i)
    e(f"s_mov_b32 s{s_cnt}, {spin}")
    stamp()
    for i in range(8):
        e(f"s_waitcnt vmcnt({9-i})")
        mfma(D0, Kf+4*i, Vf+4*i, None if i == 0 else D0)
    stamp()
    e("s_nop 6")
    e("s_mov_b32 exec_hi, 0")
    e(f"ds_write_b128 v{vOw}, {vr(D0,4)} offset:{L_OP}")
    e("s_mov_b32 exec_hi, -1")
    e("s_waitcnt lgkmcnt(0)")
    e("s_barrier")
    g.lab("L_pml")
    e(f"global_load_dwordx2 {vr(ml,2)}, v{vMp}, {sr(sWS,2)} sc1")
    e("s_waitcnt vmcnt(0)")
    e(f"v_xor_b32 v{ml}, v{ml}, v{vTc}")
    e(f"v_xor_b32 v{ml+1}, v{ml+1}, v{vTd}")
    e(f"v_or_b32 v{t0}, v{ml}, v{ml+1}")
    poll_tail(t0, "L_pml", slp)
    stamp()
    e(f"global_load_dwordx2 {vr(op,2)}, v{vAp}, {sr(sWS,2)} sc1")
    e(f"v_mov_b32 v{t0}, v{ml}")
    red8("v_max_f32", [t0])
    e(f"v_sub_f32 v{t0}, v{ml}, v{t0}")
    e(f"v_mul_f32 v{t0}, s{s_l2e}, v{t0}")
    e(f"v_exp_f32 v{t0}, v{t0}")
    e("s_nop 0")
    e(f"v_mul_f32 v{t1}, v{t0}, v{ml+1}")
    red8("v_add_f32", [t1])
    e(f"v_rcp_f32 v{t1}, v{t1}")
    e(f"s_mov_b32 s{s_cnt}, {spin}")
    e(f"v_mul_f32 v{t3}, v{t0}, v{t1}")
    e("s_branch L_pa2")
    g.lab("L_pa")
    e(f"global_load_dwordx2 {vr(op,2)}, v{vAp}, {sr(sWS,2)} sc1")
    g.lab("L_pa2")
    e("s_waitcnt vmcnt(0)")
    e(f"v_xor_b32 v{op}, v{op}, v{vTa}")
    e(f"v_xor_b32 v{op+1}, v{op+1}, v{vTb}")
    e(f"v_or_b32 v{t0}, v{op}, v{op+1}")
    poll_tail(t0, "L_pa", slp)
    stamp()
    e(f"v_mul_f32 v{op}, v{op}, v{t3}")
    e(f"v_mul_f32 v{op+1}, v{op+1}, v{t3}")
    red8("v_add_f32", [op, op+1])
    afrag(A0, op); afrag(A1, op+1)
    e("s_nop 0")
    mfma(D0, A0, wo, None)
    mfma(D0, A1, wo+4, D0)
    e("s_nop 7")
    e(f"ds_write_b128 v{vL}, {vr(D0,4)} offset:{L_SP}")
    e("s_waitcnt lgkmcnt(0)")
    e("s_barrier")
    stamp()
    e(f"ds_read_b128 {vr(D1,4)}, v{vSr} offset:{L_SP}")
    e("s_waitcnt lgkmcnt(0)")
    red8("v_add_f32", [D1+i for i in range(4)])
    tag4(D1)
    e("s_mov_b32 exec_lo, 0x01010101"); e("s_mov_b32 exec_hi, 0x01010101")
    e(f"global_store_dwordx4 v{vSc}, {vr(D1,4)}, {sr(sWS,2)} sc1")
    stamp()
    dump_stamps(Kf)
    g.lab("L_end")
    e("s_endpgm")

    nv = (g.maxv + 7) // 8 * 8
    ldsb = L_K + 65536 if kdma else L_K
    hdr = open(os.path.join(os.path.dirname(os.path.abspath(__file__)), "..", "cdna_kernels", NAME + ".s.ref")).read().split("\n")
    top = [l for l in hdr if l.startswith(";") and "@launch" not in l and "Override" not in l and "grid=ceil" not in l]
    out = top + [f"; @launch grid=(256,1,1) block=({NW*64},1,1) lds={ldsb}",
        '.amdgcn_target "amdgcn-amd-amdhsa--gfx950"', ".text", f".globl {NAME}_kernel", ".p2align 8",
        f".type {NAME}_kernel,@function", f"{NAME}_kernel:"] + g.L + [
        '.section .rodata,"a"', ".p2align 6", f".amdhsa_kernel {NAME}_kernel",
        f"  .amdhsa_next_free_vgpr {nv}", "  .amdhsa_next_free_sgpr 102", f"  .amdhsa_accum_offset {nv}",
        "  .amdhsa_group_segment_fixed_size 0", "  .amdhsa_kernarg_size 104", "  .amdhsa_user_sgpr_count 2",
        "  .amdhsa_user_sgpr_kernarg_segment_ptr 1", "  .amdhsa_system_sgpr_workgroup_id_x 1", ".end_amdhsa_kernel", ""]
    return "\n".join(out)

if __name__ == "__main__":
    import argparse
    ap = argparse.ArgumentParser()
    ap.add_argument("-o", default=None)
    ap.add_argument("--diag", action="store_true")
    ap.add_argument("--opt", default="")
    a = ap.parse_args()
    kw = eval("dict(" + a.opt + ")")
    txt = gen(diag=a.diag, **kw)
    path = a.o or os.path.join(os.path.dirname(os.path.abspath(__file__)), "..", "cdna_kernels", NAME + ".s")
    open(path, "w").write(txt)
    print("wrote", path, len(txt.split("\n")), "lines", [l for l in txt.split("\n") if "next_free_vgpr" in l])
```

```python
import sys, os
NAME = "recurrent_scan__sliding_block_cached__dense_activation_squared_relu__decode"

class G:
    def __init__(self):
        self.L = []; self.nv = 0; self.maxv = 0
    def e(self, s): self.L.append("    " + s)
    def lab(self, s): self.L.append(s + ":")
    def reset(self, n): self.nv = n
    def v(self, n=1, al=1):
        if n >= 4: al = max(al, 4) if n % 4 == 0 else max(al, 2)
        elif n >= 2: al = max(al, 2)
        self.nv = (self.nv + al - 1) // al * al
        r = self.nv; self.nv += n
        self.maxv = max(self.maxv, self.nv)
        return r

def vr(b, n): return f"v[{b}:{b+n-1}]"
def sr(b, n): return f"s[{b}:{b+n-1}]"

QBASE = 0x1000
HBASE = QBASE + 0x40000
ABASE = HBASE + 0x20000
MLBASE = ABASE + 0x40000
IDBASE = MLBASE + 0x1000
FIN = IDBASE + 0x1000
BIN = FIN + 0x40000
DIAG = 0x400000
L_Q = 0; L_FL = 512; L_ML = 640; L_OP = 1024; L_SP = 5120; SPS = 1088; L_K = 16384
NW = 10

SCALE = 0x3DB504F3
LOG2E = 0x3FB8AA3B
EPS = 0x3727C5AC

def gen(diag=False, fK="nt", fV="nt", fW="nt", kdma=True, bar0=True, fast=True, prio=True, pf=True, gate=True, vd=4, slp=1, perm=True, fmap=True, sched=None, bp=1, spin=20000):
    g = G(); e = g.e
    fl = lambda f: (" " + f) if f else ""
    fK, fV, fW = fl(fK), fl(fV), fl(fW)
    sX, sK, sV, sWQ, sWO, sW1, sB1, sW2, sB2, sOUT, sWS = 16, 18, 20, 22, 24, 28, 30, 32, 34, 36, 40
    s_wv, s_h, s_j, s_t0, s_t1, s_E, s_cnt = 3, 4, 5, 6, 7, 8, 9
    s_j1, s_cb, s_wgi = 10, 11, 12
    s_g = 43
    sT = [44, 45, 46, 47]
    s_hi, s_scale, s_l2e, s_fast = 48, 49, 50, 51
    srdA, srdB, srdC = 52, 56, 60
    sM = [64, 66, 68, 70]
    sID = 64
    s_T, s_idw, s_ido = 26, 38, 27
    sG = 100
    ST0 = 72
    nst = [0]
    def stamp():
        if diag:
            e(f"s_memrealtime {sr(ST0+2*nst[0],2)}")
            nst[0] += 1
            assert nst[0] <= 14
    def dump_stamps(vt):
        if not diag: return
        e("s_mov_b64 exec, -1")
        e("s_waitcnt vmcnt(0) lgkmcnt(0)")
        e(f"s_getreg_b32 s{s_t0}, hwreg(HW_REG_XCC_ID)")
        e(f"s_getreg_b32 s{s_t1}, hwreg(HW_REG_HW_ID)")
        for i in range(14):
            src = f"s{ST0+2*i}" if i < nst[0] else "0"
            e(f"v_mov_b32 v{vt+i}, {src}")
        e(f"v_mov_b32 v{vt+14}, s{s_t0}")
        e(f"v_mov_b32 v{vt+15}, s{s_t1}")
        e(f"s_mul_i32 s{s_t0}, s2, {NW}")
        e(f"s_add_u32 s{s_t0}, s{s_t0}, s{s_wv}")
        e(f"s_lshl_b32 s{s_t0}, s{s_t0}, 6")
        e(f"s_add_u32 s{s_t0}, s{s_t0}, {DIAG}")
        e(f"v_mov_b32 v{vt+16}, s{s_t0}")
        e("s_mov_b64 exec, 1")
        for i in range(4):
            e(f"global_store_dwordx4 v{vt+16}, {vr(vt+4*i,4)}, {sr(sWS,2)} offset:{16*i}")
    def dpp(op, d, a, b, ctl):
        e(f"{op}_dpp v{d}, v{a}, v{b} {ctl} row_mask:0xf bank_mask:0xf")
    X1, X2, HM, RM = "quad_perm:[1,0,3,2]", "quad_perm:[2,3,0,1]", "row_half_mirror", "row_mirror"
    def red8(op, regs):
        for ctl in (X1, X2, HM):
            pad = max(0, 2 - (len(regs) - 1))
            if pad: e(f"s_nop {pad-1}")
            for r in regs: dpp(op, r, r, r, ctl)
    def redgrp(op, r, tmp):
        e(f"v_mov_b32 v{tmp}, v{r}"); e("s_nop 1")
        e(f"v_permlane16_swap_b32 v{r}, v{tmp}")
        e(f"{op} v{r}, v{r}, v{tmp}")
        e(f"v_mov_b32 v{tmp}, v{r}"); e("s_nop 1")
        e(f"v_permlane32_swap_b32 v{r}, v{tmp}")
        e(f"{op} v{r}, v{r}, v{tmp}")
    def rbf(d, a):
        e(f"v_cvt_pk_bf16_f32 v{d}, v{a}, v{a}")
        e(f"v_and_b32 v{d}, s{s_hi}, v{d}")
    def rbf2(a, b, tmp):
        e(f"v_cvt_pk_bf16_f32 v{tmp}, v{a}, v{b}")
        e(f"v_lshlrev_b32 v{a}, 16, v{tmp}")
        e(f"v_and_b32 v{b}, s{s_hi}, v{tmp}")
    def mfma(d, a, b, c):
        cc = "0" if c is None else vr(c, 4)
        e(f"v_mfma_f32_16x16x32_bf16 {vr(d,4)}, {vr(a,4)}, {vr(b,4)}, {cc}")
    def srd(d, p, n):
        e(f"s_mov_b32 s{d}, s{p}"); e(f"s_mov_b32 s{d+1}, s{p+1}")
        e(f"s_mov_b32 s{d+2}, {n}"); e(f"s_mov_b32 s{d+3}, 0x20000")

    g.reset(1)
    lane, m, kg = g.v(), g.v(), g.v()
    msk = g.v(4)
    vFF = g.v()
    t0, t1, t2, t3 = g.v(), g.v(), g.v(), g.v()
    bl, m16 = g.v(), g.v()
    common_end = g.nv
    e("s_cmp_ge_u32 s2, 256")
    e("s_cbranch_scc1 L_end")
    e(f"s_load_dwordx16 {sr(16,16)}, s[0:1], 0")
    e(f"s_load_dwordx8 {sr(32,8)}, s[0:1], 64")
    e(f"s_load_dwordx2 {sr(sWS,2)}, s[0:1], 96")
    stamp()
    e(f"v_lshrrev_b32 v{t0}, 6, v0")
    e(f"v_and_b32 v{lane}, 63, v0")
    e(f"v_readfirstlane_b32 s{s_wv}, v{t0}")
    e(f"v_and_b32 v{m}, 15, v0")
    e(f"v_bfe_u32 v{kg}, v0, 4, 2")
    e(f"s_lshr_b32 s{s_h}, s2, 6")
    e(f"s_lshl_b32 s{s_h}, s{s_h}, 3")
    e(f"s_and_b32 s{s_t0}, s2, 7")
    e(f"s_add_u32 s{s_h}, s{s_h}, s{s_t0}")
    e(f"s_bfe_u32 s{s_j}, s2, 0x30003")
    e(f"s_and_b32 s{s_j1}, s{s_j}, 1")
    e(f"s_lshr_b32 s{s_cb}, s{s_j}, 1")
    e(f"s_lshl_b32 s{s_wgi}, s{s_h}, 3")
    e(f"s_add_u32 s{s_wgi}, s{s_wgi}, s{s_j}")
    if fmap:
        e(f"s_lshl_b32 s{s_g}, s{s_t0}, 2")
        e(f"s_lshr_b32 s{s_t0}, s2, 6")
        e(f"s_add_u32 s{s_g}, s{s_g}, s{s_t0}")
    else:
        e(f"s_mov_b32 s{s_g}, s{s_h}")
    e(f"s_mov_b32 s{s_hi}, 0xffff0000")
    e(f"s_mov_b32 s{s_scale}, {SCALE:#x}")
    e(f"s_mov_b32 s{s_l2e}, {LOG2E:#x}")
    e(f"v_bfe_u32 v{bl}, v0, 3, 1")
    e(f"v_lshlrev_b32 v{bl}, 10, v{bl}")
    e(f"v_lshlrev_b32 v{m16}, 4, v{m}")
    e(f"s_cmp_ge_u32 s{s_wv}, 2")
    e("s_cbranch_scc1 L_stream")

    def masks_and_tags(tags=True):
        e(f"v_bfe_u32 v{t0}, v{m}, 1, 2")
        e(f"v_and_b32 v{t1}, 1, v{m}")
        e(f"v_lshlrev_b32 v{t1}, 4, v{t1}")
        e(f"v_mov_b32 v{t2}, 0xffff")
        e(f"v_lshlrev_b32 v{t1}, v{t1}, v{t2}")
        for i in range(4): e(f"v_cmp_eq_u32 {sr(sM[i],2)}, {i}, v{t0}")
        e(f"v_mov_b32 v{vFF}, 0xffffff00")
        for i in range(4): e(f"v_cndmask_b32 v{msk+i}, 0, v{t1}, {sr(sM[i],2)}")
        if tags: do_tags()
    def do_tags():
        e("s_waitcnt lgkmcnt(0)")
        e(f"s_mul_i32 s{s_t0}, s{s_E}, 0x9e3779b1")
        e(f"s_add_u32 s{s_t0}, s{s_t0}, 0x7f4a7c15")
        e(f"s_add_u32 s{sT[0]}, s{s_E}, 1")
        e(f"s_and_b32 s{sT[0]}, s{sT[0]}, 0xff")
        e(f"s_bfe_u32 s{sT[1]}, s{s_t0}, 0x80008")
        e(f"s_bfe_u32 s{sT[2]}, s{s_t0}, 0x80010")
        e(f"s_bfe_u32 s{sT[3]}, s{s_t0}, 0x80018")
        e(f"s_and_b32 s{s_T}, s{s_t0}, 0xffffff00")
        e(f"s_or_b32 s{s_T}, s{s_T}, s{sT[0]}")
        e(f"s_getreg_b32 s{s_t1}, hwreg(HW_REG_XCC_ID, 0, 4)")
        e(f"s_and_b32 s{s_idw}, s{s_T}, -16")
        e(f"s_or_b32 s{s_idw}, s{s_idw}, s{s_t1}")
        e(f"s_mov_b32 s{s_idw+1}, s{s_idw}")
        e(f"s_lshl_b32 s{s_ido}, s{s_h}, 7")
        e(f"s_add_u32 s{s_ido}, s{s_ido}, {IDBASE}")
    def id_issue():
        e(f"s_load_dwordx8 {sr(sID,8)}, {sr(sWS,2)}, s{s_ido} glc")
    def id_check():
        for i in range(4): e(f"s_xor_b64 {sr(sID+2*i,2)}, {sr(sID+2*i,2)}, {sr(s_idw,2)}")
        e(f"s_or_b64 {sr(sID,2)}, {sr(sID,2)}, {sr(sID+2,2)}")
        e(f"s_or_b64 {sr(sID+4,2)}, {sr(sID+4,2)}, {sr(sID+6,2)}")
        e(f"s_or_b64 {sr(sID,2)}, {sr(sID,2)}, {sr(sID+4,2)}")
        e(f"s_cselect_b32 s{s_fast}, 0, 1")
    def smem_gate(lab, base, shift, stride, off, tagi):
        if not gate: return
        e(f"s_lshl_b32 s{s_t0}, s{s_h}, {shift}")
        e(f"s_add_u32 s{s_t0}, s{s_t0}, {base+off}")
        e(f"s_add_u32 s{sG}, s{sWS}, s{s_t0}")
        e(f"s_addc_u32 s{sG+1}, s{sWS+1}, 0")
        e(f"s_movk_i32 s{s_t1}, 200")
        g.lab(lab)
        for p in range(8): e(f"s_load_dword s{sID+p}, {sr(sG,2)}, {p*stride} glc")
        e(f"s_sub_u32 s{s_t1}, s{s_t1}, 1")
        e(f"s_cbranch_scc1 {lab}_to")
        e("s_waitcnt lgkmcnt(0)")
        for p in range(8): e(f"s_xor_b32 s{sID+p}, s{sID+p}, s{sT[tagi]}")
        e(f"s_or_b64 {sr(sID,2)}, {sr(sID,2)}, {sr(sID+2,2)}")
        e(f"s_or_b64 {sr(sID+4,2)}, {sr(sID+4,2)}, {sr(sID+6,2)}")
        e(f"s_or_b64 {sr(sID,2)}, {sr(sID,2)}, {sr(sID+4,2)}")
        e(f"s_or_b32 s{sID}, s{sID}, s{sID+1}")
        e(f"s_and_b32 s{sID}, s{sID}, 0xff")
        e(f"s_cbranch_scc1 {lab}")
        g.lab(f"{lab}_to")
        e("s_waitcnt lgkmcnt(0)")
    def afrag(dst, val):
        e(f"v_cvt_pk_bf16_f32 v{dst+3}, v{val}, v{val}")
        for i in range(4): e(f"v_and_b32 v{dst+i}, v{msk+i}, v{dst+3}")
    def tag4(d):
        for i in range(4): e(f"v_and_or_b32 v{d+i}, v{d+i}, v{vFF}, s{sT[i]}")
    def poll_tail(acc, lab, sleep=0):
        e(f"v_and_b32 v{acc}, 0xff, v{acc}")
        e(f"v_cmp_ne_u32 vcc, 0, v{acc}")
        e(f"s_cbranch_vccz {lab}_ok")
        if sleep: e(f"s_sleep {sleep}")
        e(f"s_sub_u32 s{s_cnt}, s{s_cnt}, 1")
        e(f"s_cmp_lg_u32 s{s_cnt}, 0")
        e(f"s_cbranch_scc1 {lab}")
        g.lab(f"{lab}_ok")
    npub = [0]
    def publish(vaddr, d, slow=False, n4=4):
        if slow or not fast:
            e(f"global_store_dwordx{n4} v{vaddr}, {vr(d,n4)}, {sr(sWS,2)} sc1"); return
        n = npub[0]; npub[0] += 1
        e(f"s_cmp_eq_u32 s{s_fast}, 0")
        e(f"s_cbranch_scc1 L_ps{n}")
        e(f"global_store_dwordx{n4} v{vaddr}, {vr(d,n4)}, {sr(sWS,2)}")
        e(f"s_branch L_pd{n}")
        g.lab(f"L_ps{n}")
        e(f"global_store_dwordx{n4} v{vaddr}, {vr(d,n4)}, {sr(sWS,2)} sc1")
        g.lab(f"L_pd{n}")
    def sum_n(base, n):
        step = 1
        while step < n:
            for i in range(0, n, 2*step):
                for r in range(4):
                    e(f"v_add_f32 v{base+4*i+r}, v{base+4*i+r}, v{base+4*(i+step)+r}")
            step *= 2
    def tagpair(da, db, cond):
        e(f"v_mov_b32 v{t0}, s{sT[0]}"); e(f"v_mov_b32 v{t1}, s{sT[1]}")
        e(f"v_mov_b32 v{t2}, s{sT[2]}"); e(f"v_mov_b32 v{t3}, s{sT[3]}")
        e(f"v_cndmask_b32 v{da}, v{t0}, v{t2}, {sr(cond,2)}")
        e(f"v_cndmask_b32 v{db}, v{t1}, v{t3}, {sr(cond,2)}")

    vX, vXr, vW, vPub, vl16, c2, vPf = [g.v() for _ in range(7)]
    xd = g.v(8); xl = g.v(8); xr = g.v(8)
    W = g.v(64); AF = g.v(8); D = g.v(4)
    aux_end = g.nv
    s_str, s_off, s_lim = 13, 14, 15
    if prio: e("s_setprio 3")
    if pf:
        e(f"s_getpc_b64 {sr(sG,2)}")
        g.lab("L_pc")
        e(f"v_lshlrev_b32 v{vPf}, 7, v0")
        e(f"v_min_u32 v{vPf}, L_end-L_pc, v{vPf}")
        e(f"global_load_dword v{vPf}, v{vPf}, {sr(sG,2)}")
    e(f"v_lshlrev_b32 v{t0}, 2, v{lane}")
    e(f"v_mov_b32 v{t1}, 0")
    e(f"ds_write_b32 v{t0}, v{t1} offset:{L_FL}")
    e(f"s_movk_i32 s{s_str}, 2752")
    e(f"s_movk_i32 s{s_t1}, 96")
    e(f"s_cmp_eq_u32 s{s_wv}, 0")
    e(f"s_cmovk_i32 s{s_str}, 8192")
    e(f"s_cmovk_i32 s{s_t1}, 256")
    e(f"s_cselect_b32 s{s_lim}, s{s_h}, s{s_g}")
    e(f"s_lshl_b32 s{srdA+2}, s{s_str}, 9")
    e(f"s_mul_i32 s{s_t1}, s{s_t1}, s{s_lim}")
    e(f"s_mul_i32 s{s_lim}, s{s_g}, 6")
    e(f"s_sub_i32 s{s_lim}, 172, s{s_lim}")
    e(f"s_min_i32 s{s_lim}, s{s_lim}, 6")
    e(f"s_cmp_eq_u32 s{s_wv}, 0")
    e(f"s_cselect_b32 s{s_lim}, 16, s{s_lim}")
    e(f"s_mov_b32 s{srdA+3}, 0x20000")
    e(f"v_and_b32 v{t0}, 7, v0")
    e(f"v_lshl_add_u32 v{vX}, v{t0}, 5, v{bl}")
    e(f"v_lshl_add_u32 v{vX}, v{kg}, 8, v{vX}")
    e(f"s_lshl_b32 s{s_t0}, s{s_j}, 6")
    e(f"v_lshl_add_u32 v{t1}, v{kg}, 4, s{s_t0}")
    e(f"v_lshl_add_u32 v{vXr}, v{t1}, 1, v{bl}")
    e(f"v_mul_u32_u24 v{vW}, s{s_str}, v{t1}")
    e(f"v_add3_u32 v{vW}, v{vW}, v{m16}, s{s_t1}")
    e(f"v_cmp_gt_i32 vcc, s{s_lim}, v{m}")
    e(f"v_bfrev_b32 v{t2}, 1")
    e(f"s_mov_b32 s{s_off}, 0")
    e(f"s_cmp_eq_u32 s{s_wv}, 0")
    e(f"v_cndmask_b32 v{vW}, v{t2}, v{vW}, vcc")
    e("s_waitcnt lgkmcnt(0)")
    e(f"s_cselect_b32 s{srdA}, s{sWQ}, s{sW1}")
    e(f"s_cselect_b32 s{srdA+1}, s{sWQ+1}, s{sW1+1}")
    e(f"s_load_dword s{s_E}, {sr(sWS,2)}, 0")
    stamp()
    e(f"global_load_dwordx4 {vr(xd,4)}, v{vX}, {sr(sX,2)}")
    e(f"global_load_dwordx4 {vr(xd+4,4)}, v{vX}, {sr(sX,2)} offset:16")
    e(f"global_load_dwordx4 {vr(xr,4)}, v{vXr}, {sr(sX,2)}")
    e(f"global_load_dwordx4 {vr(xr+4,4)}, v{vXr}, {sr(sX,2)} offset:16")
    for t in range(16):
        e(f"buffer_load_dwordx4 {vr(W+4*t,4)}, v{vW}, {sr(srdA,4)}, s{s_off} offen{fW}")
        if t < 15: e(f"s_add_u32 s{s_off}, s{s_off}, s{s_str}")
    e("s_barrier")
    stamp()
    e(f"v_lshlrev_b32 v{vl16}, 4, v{lane}")
    e(f"v_and_b32 v{t1}, 1, v{kg}")
    e(f"v_lshl_add_u32 v{c2}, v{m}, 1, v{t1}")
    e(f"s_cmp_eq_u32 s{s_wv}, 0")
    e("s_cbranch_scc0 L_fx")
    vFo, vB2o, xo, b2v, gv, vIn, vQp, vQw = [g.v() for _ in range(8)]
    vSc, vHpa, vHpb, vTa, vTb, b1b = [g.v() for _ in range(6)]
    b1a = g.v(2); w2 = g.v(24)
    s_fr = 42
    e(f"s_lshl_b32 s{s_t0}, s{s_wgi}, 10")
    e(f"s_add_u32 s{s_t0}, s{s_t0}, {QBASE}")
    e(f"v_add_u32 v{vPub}, s{s_t0}, v{vl16}")
    e("s_branch L_ln")
    g.lab("L_fx")
    e(f"v_lshrrev_b32 v{t0}, 1, v{kg}")
    e(f"v_lshlrev_b32 v{vPub}, 4, v{c2}")
    e(f"v_lshl_add_u32 v{vPub}, v{t0}, 8, v{vPub}")
    e(f"s_lshl_b32 s{s_t0}, s{s_wgi}, 9")
    e(f"s_add_u32 s{s_t0}, s{s_t0}, {HBASE}")
    e(f"v_add_u32 v{vPub}, s{s_t0}, v{vPub}")
    g.lab("L_ln")
    masks_and_tags(False)
    e("s_waitcnt vmcnt(18)")
    stamp()
    for i in range(8):
        e(f"v_lshlrev_b32 v{xl+i}, 16, v{xd+i}")
        e(f"v_and_b32 v{xd+i}, s{s_hi}, v{xd+i}")
    e(f"v_add_f32 v{t0}, v{xl}, v{xd}")
    e(f"v_add_f32 v{t1}, v{xl+1}, v{xd+1}")
    for i in range(2, 8, 2):
        e(f"v_add_f32 v{t0}, v{t0}, v{xl+i}")
        e(f"v_add_f32 v{t1}, v{t1}, v{xl+i+1}")
        e(f"v_add_f32 v{t0}, v{t0}, v{xd+i}")
        e(f"v_add_f32 v{t1}, v{t1}, v{xd+i+1}")
    e(f"v_add_f32 v{t0}, v{t0}, v{t1}")
    red8("v_add_f32", [t0]); redgrp("v_add_f32", t0, t1)
    e(f"v_mul_f32 v{t0}, 0x3b000000, v{t0}")
    for i in range(8):
        e(f"v_sub_f32 v{xl+i}, v{xl+i}, v{t0}")
        e(f"v_sub_f32 v{xd+i}, v{xd+i}, v{t0}")
    e(f"v_mul_f32 v{t1}, v{xl}, v{xl}")
    e(f"v_mul_f32 v{t2}, v{xd}, v{xd}")
    for i in range(1, 8):
        e(f"v_fmac_f32 v{t1}, v{xl+i}, v{xl+i}")
        e(f"v_fmac_f32 v{t2}, v{xd+i}, v{xd+i}")
    e(f"v_add_f32 v{t1}, v{t1}, v{t2}")
    red8("v_add_f32", [t1]); redgrp("v_add_f32", t1, t2)
    e(f"v_mul_f32 v{t1}, 0x3b000000, v{t1}")
    rbf2(t0, t1, t2)
    e(f"v_add_f32 v{t1}, {EPS:#x}, v{t1}")
    rbf(t1, t1)
    e(f"v_sqrt_f32 v{t1}, v{t1}")
    e("s_nop 0")
    rbf(t1, t1)
    e(f"v_rcp_f32 v{t1}, v{t1}")
    e("s_waitcnt vmcnt(16)")
    for i in range(8):
        e(f"v_lshlrev_b32 v{xl+i}, 16, v{xr+i}")
        e(f"v_and_b32 v{xd+i}, s{s_hi}, v{xr+i}")
        e(f"v_sub_f32 v{xl+i}, v{xl+i}, v{t0}")
        e(f"v_sub_f32 v{xd+i}, v{xd+i}, v{t0}")
        rbf2(xl+i, xd+i, t2)
        e(f"v_mul_f32 v{xl+i}, v{xl+i}, v{t1}")
        e(f"v_mul_f32 v{xd+i}, v{xd+i}, v{t1}")
    stamp()
    val = lambda t: (xl if t % 2 == 0 else xd) + t // 2
    afrag(AF, val(0))
    for t in range(16):
        if t < 15: afrag(AF + 4*((t+1) % 2), val(t+1))
        else: e("s_nop 1")
        if t % 4 == 0: e(f"s_waitcnt vmcnt({12 - t})")
        mfma(D, AF + 4*(t % 2), W + 4*t, None if t == 0 else D)
    stamp()
    do_tags()
    tag4(D)
    e(f"s_mov_b32 s{s_cnt}, {spin}")
    e(f"s_cmp_eq_u32 s{s_wv}, 0")
    e("s_cbranch_scc0 L_f2")
    nst_split = nst[0]
    P = W
    publish(vPub, D, True)
    stamp()
    e(f"s_lshl_b32 s{s_t0}, s{s_j}, 2")
    e(f"s_add_u32 s{s_t0}, s{s_t0}, s{s_ido}")
    e(f"v_mov_b32 v{t0}, s{s_t0}")
    e(f"v_mov_b32 v{t1}, s{s_idw}")
    e("s_mov_b64 exec, 1")
    e(f"global_store_dword v{t0}, v{t1}, {sr(sWS,2)} sc1")
    e("s_mov_b64 exec, -1")
    vW2a, vW2b = vX, vXr
    e(f"s_mul_i32 s{s_fr}, s{s_g}, 48")
    e(f"s_mul_i32 s{s_t0}, s{s_j1}, 24")
    e(f"s_add_u32 s{s_fr}, s{s_fr}, s{s_t0}")
    e(f"s_lshl_b32 s{s_t0}, s{s_fr}, 10")
    e(f"s_lshl_b32 s{s_t1}, s{s_cb}, 8")
    e(f"s_add_u32 s{s_t0}, s{s_t0}, s{s_t1}")
    e(f"v_lshl_add_u32 v{vW2a}, v{kg}, 12, v{m16}")
    e(f"v_add_u32 v{vW2a}, s{s_t0}, v{vW2a}")
    e(f"s_add_u32 s{s_t0}, s{s_t0}, {16*1024}")
    e(f"v_lshl_add_u32 v{vW2b}, v{kg}, 11, v{m16}")
    e(f"v_add_u32 v{vW2b}, s{s_t0}, v{vW2b}")
    srd(srdB, sW2, 1376*1024); srd(srdC, sB1, 2752)
    for t in range(4):
        e(f"buffer_load_dwordx4 {vr(w2+4*t,4)}, v{vW2a}, {sr(srdB,4)}, 0 offen offset:{t*1024}{fW}")
    for t in range(2):
        e(f"buffer_load_dwordx4 {vr(w2+16+4*t,4)}, v{vW2b}, {sr(srdB,4)}, 0 offen offset:{t*1024}{fW}")
    e(f"s_lshl_b32 s{s_t0}, s{s_fr}, 1")
    e(f"v_lshl_add_u32 v{t2}, v{kg}, 3, s{s_t0}")
    e(f"v_lshl_add_u32 v{t3}, v{kg}, 2, s{s_t0}")
    e(f"buffer_load_dwordx2 {vr(b1a,2)}, v{t2}, {sr(srdC,4)}, 0 offen")
    e(f"buffer_load_dword v{b1b}, v{t3}, {sr(srdC,4)}, 0 offen offset:32")
    e(f"v_and_b32 v{t1}, 1, v{kg}")
    e(f"v_cmp_eq_u32 {sr(sM[0],2)}, 1, v{t1}")
    e(f"v_lshlrev_b32 v{t1}, 2, v{t1}")
    e(f"v_and_or_b32 v{t1}, v{kg}, 2, v{t1}")
    e(f"s_lshl_b32 s{s_t0}, s2, 3")
    e(f"v_add_u32 v{vFo}, s{s_t0}, v{t1}")
    e(f"v_and_b32 v{vB2o}, 0x3ff, v{vFo}")
    e(f"global_load_ushort v{xo}, v{vFo}, {sr(sX,2)}")
    e(f"global_load_ushort v{b2v}, v{vB2o}, {sr(sB2,2)}")
    e(f"s_lshl_b32 s{s_t0}, s{s_h}, 13")
    e(f"s_add_u32 s{s_t1}, s{s_t0}, {ABASE}")
    e(f"v_lshl_add_u32 v{vPf}, v{lane}, 7, s{s_t1}")
    e(f"global_load_dword v{vPf}, v{vPf}, {sr(sWS,2)} sc1")
    tagpair(vTa, vTb, sM[0])
    e(f"s_add_u32 s{s_t0}, s{s_t0}, {QBASE+4096}")
    e(f"v_add_u32 v{vQp}, s{s_t0}, v{vl16}")
    e(f"v_lshrrev_b32 v{t1}, 1, v{kg}")
    e(f"v_lshlrev_b32 v{vQw}, 3, v{c2}")
    e(f"v_lshl_add_u32 v{vQw}, v{t1}, 8, v{vQw}")
    e(f"v_lshl_add_u32 v{vSc}, v{t1}, 7, v{c2}")
    e(f"s_lshl_b32 s{s_t0}, s{s_cb}, 15")
    e(f"s_lshl_b32 s{s_t1}, s{s_h}, 5")
    e(f"s_add_u32 s{s_t0}, s{s_t0}, s{s_t1}")
    e(f"s_lshl_b32 s{s_t1}, s{s_j1}, 4")
    e(f"s_add_u32 s{s_t0}, s{s_t0}, s{s_t1}")
    e(f"s_add_u32 s{s_t0}, s{s_t0}, {FIN}")
    e(f"v_lshl_add_u32 v{vSc}, v{vSc}, 10, s{s_t0}")
    e(f"v_and_b32 v{t0}, 7, v{m}")
    e(f"v_lshrrev_b32 v{t2}, 2, v{bl}")
    e(f"v_lshl_add_u32 v{t2}, v{t0}, 9, v{t2}")
    e(f"s_lshl_b32 s{s_t0}, s{s_h}, 12")
    e(f"s_mul_i32 s{s_t1}, s{s_j1}, 96")
    e(f"s_add_u32 s{s_t0}, s{s_t0}, s{s_t1}")
    e(f"s_add_u32 s{s_t0}, s{s_t0}, {HBASE}")
    e(f"v_add_u32 v{t2}, s{s_t0}, v{t2}")
    e(f"v_lshl_add_u32 v{vHpa}, v{kg}, 4, v{t2}")
    e(f"v_lshl_add_u32 v{vHpb}, v{kg}, 3, v{t2}")
    e(f"v_mov_b32 v{t3}, 0")
    e(f"v_mov_b32 v{t2}, 1")
    smem_gate("L_gq", QBASE, 13, 1024, 1020, 3)
    stamp()
    hp = xl; AF6 = W + 32
    def hloads():
        e(f"global_load_dwordx4 {vr(hp,4)}, v{vHpa}, {sr(sWS,2)} sc1")
        e(f"global_load_dwordx2 {vr(hp+4,2)}, v{vHpb}, {sr(sWS,2)} offset:64 sc1")
    g.lab("L_pq")
    for p in range(8):
        e(f"global_load_dwordx4 {vr(P+4*p,4)}, v{vQp}, {sr(sWS,2)} offset:{p*1024-4096} sc1")
    hloads()
    for p in range(8):
        e(f"s_waitcnt vmcnt({9-p})")
        for r in range(4): e(f"v_xor_b32 v{P+4*p+r}, s{sT[r]}, v{P+4*p+r}")
        if p == 0: e(f"v_or_b32 v{t0}, v{P}, v{P+1}")
        else: e(f"v_or3_b32 v{t0}, v{t0}, v{P+4*p}, v{P+4*p+1}")
        e(f"v_or3_b32 v{t0}, v{t0}, v{P+4*p+2}, v{P+4*p+3}")
    poll_tail(t0, "L_pq")
    stamp()
    sum_n(P, 8)
    e(f"v_cvt_pk_bf16_f32 v{P}, v{P}, v{P+1}")
    e(f"v_cvt_pk_bf16_f32 v{P+1}, v{P+2}, v{P+3}")
    e(f"ds_write_b64 v{vQw}, {vr(P,2)} offset:{L_Q}")
    e("s_waitcnt lgkmcnt(0)")
    e("s_mov_b64 exec, 1")
    e(f"ds_write_b32 v{t3}, v{t2} offset:{L_FL}")
    e("s_mov_b64 exec, -1")
    id_issue()
    e(f"s_mov_b32 s{s_cnt}, {spin}")
    e("s_branch L_ph_c")
    g.lab("L_ph")
    hloads()
    g.lab("L_ph_c")
    e("s_waitcnt vmcnt(0)")
    for r in range(4): e(f"v_xor_b32 v{hp+r}, s{sT[r]}, v{hp+r}")
    e(f"v_xor_b32 v{hp+4}, v{vTa}, v{hp+4}")
    e(f"v_xor_b32 v{hp+5}, v{vTb}, v{hp+5}")
    e(f"v_or_b32 v{t0}, v{hp+4}, v{hp+5}")
    for i in range(0, 4, 2): e(f"v_or3_b32 v{t0}, v{t0}, v{hp+i}, v{hp+i+1}")
    poll_tail(t0, "L_ph")
    red8("v_add_f32", [hp+i for i in range(6)])
    for i in range(0, 6, 2): rbf2(hp+i, hp+i+1, t0)
    bsrc = [b1a, b1a+1, b1b]
    for i in range(3):
        e(f"v_lshlrev_b32 v{t0}, 16, v{bsrc[i]}")
        e(f"v_and_b32 v{t1}, s{s_hi}, v{bsrc[i]}")
        e(f"v_add_f32 v{hp+2*i}, v{hp+2*i}, v{t0}")
        e(f"v_add_f32 v{hp+2*i+1}, v{hp+2*i+1}, v{t1}")
    for i in range(0, 6, 2): rbf2(hp+i, hp+i+1, t0)
    for i in range(6): e(f"v_max_f32 v{hp+i}, 0, v{hp+i}")
    for i in range(6): e(f"v_mul_f32 v{hp+i}, v{hp+i}, v{hp+i}")
    for i in range(6): afrag(AF6+4*i, hp+i)
    e("s_nop 1")
    for i in range(6): mfma(D, AF6+4*i, w2+4*i, None if i == 0 else D)
    vMr, vOr, vMs, vZ = vX, vXr, vW, vPf
    fw = xd; MLv = xl
    e(f"s_lshl_b32 s{s_t0}, s2, 10")
    e(f"s_add_u32 s{s_t0}, s{s_t0}, {FIN}")
    e(f"v_add_u32 v{vIn}, s{s_t0}, v{vl16}")
    e(f"v_lshrrev_b32 v{vZ}, 5, v{lane}")
    e(f"v_lshlrev_b32 v{vMr}, 6, v{vZ}")
    e(f"v_and_b32 v{t0}, 31, v{lane}")
    e(f"v_lshlrev_b32 v{vOr}, 4, v{t0}")
    e(f"v_lshl_add_u32 v{vOr}, v{vZ}, 11, v{vOr}")
    tag4(D)
    e(f"global_store_dwordx4 v{vSc}, {vr(D,4)}, {sr(sWS,2)} sc1")
    stamp()
    e(f"s_lshl_b32 s{s_t0}, s{s_wgi}, 4")
    e(f"s_add_u32 s{s_t0}, s{s_t0}, {MLBASE}")
    e(f"v_lshl_add_u32 v{vMs}, v{vZ}, 3, s{s_t0}")
    e(f"s_lshl_b32 s{s_t0}, s{s_h}, 13")
    e(f"s_lshl_b32 s{s_t1}, s{s_j}, 4")
    e(f"s_add_u32 s{s_t0}, s{s_t0}, s{s_t1}")
    e(f"s_add_u32 s{s_t0}, s{s_t0}, {ABASE}")
    e(f"v_lshl_add_u32 v{vPub}, v{t0}, 8, s{s_t0}")
    e(f"v_lshl_add_u32 v{vPub}, v{vZ}, 7, v{vPub}")
    e("s_waitcnt lgkmcnt(0)")
    id_check()
    e(f"v_cmp_eq_u32 {sr(sM[0],2)}, 1, v{vZ}")
    tagpair(vTa, vTb, sM[0])
    e(f"v_mov_b32 v{vZ}, 0")
    e(f"v_lshlrev_b32 v{b2v}, 16, v{b2v}")
    e(f"v_lshlrev_b32 v{xo}, 16, v{xo}")
    e(f"s_mov_b32 s{s_cnt}, {spin*16}")
    g.lab("L_wm")
    for i in range(4): e(f"ds_read_b128 {vr(P+4*i,4)}, v{vMr} offset:{L_ML+16*i}")
    e("s_waitcnt lgkmcnt(0)")
    e(f"v_and_b32 v{t0}, v{P+2}, v{P+6}")
    e(f"v_and_b32 v{t1}, v{P+10}, v{P+14}")
    e(f"v_and_b32 v{t0}, v{t0}, v{t1}")
    e(f"v_cmp_ne_u32 vcc, 1, v{t0}")
    e("s_cbranch_vccz L_wm_ok")
    e("s_sleep 1")
    e(f"s_sub_u32 s{s_cnt}, s{s_cnt}, 1")
    e(f"s_cmp_lg_u32 s{s_cnt}, 0")
    e("s_cbranch_scc1 L_wm")
    g.lab("L_wm_ok")
    e(f"v_max3_f32 v{MLv}, v{P}, v{P+4}, v{P+8}")
    e(f"v_max_f32 v{MLv}, v{MLv}, v{P+12}")
    for i in range(4): e(f"v_sub_f32 v{fw+i}, v{P+4*i}, v{MLv}")
    for i in range(4): e(f"v_mul_f32 v{fw+i}, s{s_l2e}, v{fw+i}")
    for i in range(4): e(f"v_exp_f32 v{fw+i}, v{fw+i}")
    e(f"v_mul_f32 v{MLv+1}, v{fw}, v{P+1}")
    for i in range(1, 4): e(f"v_fmac_f32 v{MLv+1}, v{fw+i}, v{P+4*i+1}")
    e(f"v_and_or_b32 v{MLv}, v{MLv}, v{vFF}, v{vTa}")
    e(f"v_and_or_b32 v{MLv+1}, v{MLv+1}, v{vFF}, v{vTb}")
    e("s_mov_b32 exec_lo, 1"); e("s_mov_b32 exec_hi, 1")
    publish(vMs, MLv, n4=2)
    e("s_mov_b64 exec, -1")
    e(f"s_mov_b32 s{s_cnt}, {spin}")
    e("s_barrier")
    for i in range(4): e(f"ds_read_b128 {vr(P+4*i,4)}, v{vOr} offset:{L_OP+512*i}")
    e("s_waitcnt lgkmcnt(3)")
    for r in range(4): e(f"v_mul_f32 v{P+r}, v{P+r}, v{fw}")
    for i in range(1, 4):
        e(f"s_waitcnt lgkmcnt({3-i})")
        for r in range(4): e(f"v_fmac_f32 v{P+r}, v{P+4*i+r}, v{fw+i}")
    tag4(P)
    publish(vPub, P)
    stamp()
    Q = P + 16
    e(f"global_load_dwordx4 {vr(Q,4)}, v{vIn}, {sr(sWS,2)} sc1")
    e("s_barrier")
    def chk(Q):
        for r in range(4): e(f"v_xor_b32 v{Q+r}, s{sT[r]}, v{Q+r}")
        e(f"v_or_b32 v{t0}, v{Q}, v{Q+1}")
        e(f"v_or3_b32 v{t0}, v{t0}, v{Q+2}, v{Q+3}")
    def red64(Q):
        e(f"v_permlane32_swap_b32 v{Q}, v{Q+1}")
        e(f"v_permlane32_swap_b32 v{Q+2}, v{Q+3}")
        e(f"v_add_f32 v{Q}, v{Q}, v{Q+1}")
        e(f"v_add_f32 v{Q+2}, v{Q+2}, v{Q+3}")
        e("s_nop 1")
        e(f"v_permlane16_swap_b32 v{Q}, v{Q+2}")
        e(f"v_add_f32 v{Q}, v{Q}, v{Q+2}")
        for ctl in (X1, X2, HM, RM):
            e("s_nop 1"); dpp("v_add_f32", Q, Q, Q, ctl)
        rbf(Q, Q)
    e("s_branch L_pf_c")
    g.lab("L_pf")
    e(f"global_load_dwordx4 {vr(Q,4)}, v{vIn}, {sr(sWS,2)} sc1")
    g.lab("L_pf_c")
    e("s_waitcnt vmcnt(0)")
    chk(Q)
    poll_tail(t0, "L_pf")
    stamp()
    e(f"v_add_u32 v{vIn}, {BIN-FIN}, v{vIn}")
    QB = P + 20
    e(f"global_load_dwordx4 {vr(QB,4)}, v{vIn}, {sr(sWS,2)} sc1")
    red64(Q)
    e(f"v_add_f32 v{Q}, v{Q}, v{b2v}")
    rbf(Q, Q)
    e(f"v_mul_f32 v{t0}, s{s_l2e}, v{Q}")
    e(f"v_exp_f32 v{t0}, -v{t0}")
    e("s_nop 0")
    e(f"v_add_f32 v{t0}, 1.0, v{t0}")
    e(f"v_rcp_f32 v{t0}, v{t0}")
    e("s_nop 0")
    e(f"v_mul_f32 v{gv}, v{Q}, v{t0}")
    rbf(gv, gv)
    e(f"s_mov_b32 s{s_cnt}, {spin}")
    e("s_branch L_pb_c")
    g.lab("L_pb")
    e(f"global_load_dwordx4 {vr(QB,4)}, v{vIn}, {sr(sWS,2)} sc1")
    g.lab("L_pb_c")
    e("s_waitcnt vmcnt(0)")
    chk(QB)
    poll_tail(t0, "L_pb")
    stamp()
    red64(QB)
    e(f"v_mul_f32 v{QB}, v{QB}, v{gv}")
    rbf(QB, QB)
    e(f"v_add_f32 v{QB}, v{QB}, v{xo}")
    e(f"v_cvt_pk_bf16_f32 v{QB}, v{QB}, v{QB}")
    e("s_mov_b32 exec_lo, 0x00010001"); e("s_mov_b32 exec_hi, 0x00010001")
    e(f"global_store_short v{vFo}, v{QB}, {sr(sOUT,2)}")
    e("s_cmp_lg_u32 s2, 0")
    e("s_cbranch_scc1 L_noep")
    e(f"s_add_u32 s{s_t0}, s{s_E}, 1")
    e(f"v_mov_b32 v{t0}, s{s_t0}")
    e("s_mov_b64 exec, 1")
    e(f"global_store_dword v{vZ}, v{t0}, {sr(sWS,2)}")
    g.lab("L_noep")
    stamp()
    dump_stamps(W+32)
    e("s_endpgm")
    g.lab("L_f2")
    nst[0] = nst_split
    e("s_mov_b32 exec_lo, 0x003f003f"); e("s_mov_b32 exec_hi, 0x003f003f")
    publish(vPub, D, True)
    stamp()
    dump_stamps(W+32)
    e("s_endpgm")

    g.lab("L_stream")
    nst[0] = 1 if diag else 0
    g.reset(common_end)
    vKa = g.v(4); vKr = g.v(4)
    vV, vWo, vQr, vOw, vAp, vMp, vMw, vL, vSr, vSc, vTa, vTb, vTc, vTd, vZ, fv = [g.v() for _ in range(16)]
    mw = g.v(4); lw = mw + 1
    ml = g.v(2); op = g.v(4)
    s_par = 68
    qf = g.v(16); Kf = g.v(32); Vf = g.v(32); wo = g.v(8)
    D0 = g.v(4); D1 = g.v(4)
    A0 = qf; A1 = qf + 4
    s_sw, s_bw, s_kv = 13, 14, 15
    e(f"s_sub_u32 s{s_sw}, s{s_wv}, 2")
    e(f"s_lshr_b32 s{s_bw}, s{s_sw}, 2")
    e(f"s_and_b32 s{s_t0}, s{s_sw}, 3")
    e(f"s_lshl_b32 s{s_t0}, s{s_t0}, 13")
    e(f"s_lshl_b32 s{s_kv}, s{s_bw}, 25")
    e(f"s_lshl_b32 s{s_t1}, s{s_h}, 20")
    e(f"s_add_u32 s{s_kv}, s{s_kv}, s{s_t1}")
    e(f"s_add_u32 s{s_kv}, s{s_kv}, s{s_t0}")
    e(f"s_lshl_b32 s{s_t1}, s{s_j}, 15")
    e(f"s_add_u32 s{s_kv}, s{s_kv}, s{s_t1}")
    e(f"s_add_u32 s{s_kv}, s{s_kv}, {3072*256}")
    s_c2, s_cK, s_cV, s_m0b, s_so = 42, 43, 60, 61, 62
    if perm:
        e(f"s_lshl_b32 s{s_t0}, s2, 3")
        e(f"s_add_u32 s{s_t0}, s{s_t0}, s{s_sw}")
        e(f"s_mul_i32 s{s_t0}, s{s_t0}, 0x9e3779b1")
        e(f"s_lshr_b32 s{s_t0}, s{s_t0}, 29")
    else:
        e(f"s_mov_b32 s{s_t0}, 0")
    e(f"s_and_b32 s{s_c2}, s{s_t0}, 3")
    e(f"s_lshl_b32 s{s_cK}, s{s_t0}, 10")
    e(f"s_and_b32 s{s_cV}, s{s_cK}, 0x1000")
    e(f"s_lshl_b32 s{s_t1}, s{s_c2}, 8")
    e(f"s_or_b32 s{s_cV}, s{s_cV}, s{s_t1}")
    e(f"s_lshl_b32 s{s_t1}, s{s_c2}, 2")
    e(f"v_xor_b32 v{t0}, v{m}, v{kg}")
    e(f"v_xor_b32 v{t0}, s{s_t1}, v{t0}")
    e(f"v_lshl_add_u32 v{t1}, v{kg}, 8, s{s_kv}")
    for i in range(4):
        if i: e(f"v_xor_b32 v{t2}, {4*i}, v{t0}")
        e(f"v_lshl_add_u32 v{vKa+i}, v{t2 if i else t0}, 4, v{t1}")
    e(f"s_lshl_b32 s{s_m0b}, s{s_sw}, 13")
    e(f"s_add_u32 s{s_m0b}, s{s_m0b}, {L_K}")
    e(f"s_and_b32 s{s_t1}, s{s_cK}, 0xc00")
    e(f"s_or_b32 s{s_m0b}, s{s_m0b}, s{s_t1}")
    e(f"v_lshl_add_u32 v{vV}, v{kg}, 10, s{s_kv}")
    e(f"v_add_u32 v{vV}, v{vV}, v{m16}")
    e(f"s_mov_b32 s{srdA+2}, {1<<26}"); e(f"s_mov_b32 s{srdA+3}, 0x20000")
    e(f"s_mov_b32 s{srdB+2}, {1<<26}"); e(f"s_mov_b32 s{srdB+3}, 0x20000")
    e("s_waitcnt lgkmcnt(0)")
    e(f"s_mov_b32 s{srdA}, s{sK}"); e(f"s_mov_b32 s{srdA+1}, s{sK+1}")
    e(f"s_mov_b32 s{srdB}, s{sV}"); e(f"s_mov_b32 s{srdB+1}, s{sV+1}")
    e(f"s_load_dword s{s_E}, {sr(sWS,2)}, 0")
    e("s_barrier")
    stamp()
    def prep():
        masks_and_tags()
        e(f"s_lshl_b32 s{s_t0}, s{s_h}, 7")
        e(f"s_lshl_b32 s{s_t1}, s{s_j1}, 6")
        e(f"s_add_u32 s{s_t0}, s{s_t0}, s{s_t1}")
        e(f"s_lshr_b32 s{s_t1}, s{s_sw}, 1")
        e(f"s_lshl_b32 s{s_t1}, s{s_t1}, 4")
        e(f"s_add_u32 s{s_t0}, s{s_t0}, s{s_t1}")
        e(f"s_and_b32 s{s_t1}, s{s_sw}, 1")
        e(f"s_lshl_b32 s{s_t1}, s{s_t1}, 1")
        e(f"s_add_u32 s{s_t0}, s{s_t0}, s{s_t1}")
        e(f"s_lshl_b32 s{s_t0}, s{s_t0}, 10")
        e(f"s_lshl_b32 s{s_t1}, s{s_cb}, 8")
        e(f"s_add_u32 s{s_t0}, s{s_t0}, s{s_t1}")
        e(f"v_lshl_add_u32 v{vWo}, v{kg}, 12, v{m16}")
        e(f"v_add_u32 v{vWo}, s{s_t0}, v{vWo}")
        e(f"s_lshl_b32 s{s_t0}, s{s_bw}, 8")
        e(f"v_lshl_add_u32 v{vQr}, v{kg}, 4, s{s_t0}")
        e(f"v_mov_b32 v{vZ}, 0")
        e(f"s_lshl_b32 s{s_t0}, s{s_sw}, 13")
        e(f"s_add_u32 s{s_t0}, s{s_t0}, {L_K}")
        e(f"v_xor_b32 v{t0}, s{s_c2}, v{m}")
        e(f"v_lshl_add_u32 v{t1}, v{t0}, 8, s{s_t0}")
        e(f"v_xor_b32 v{t0}, v{t0}, v{kg}")
        for s in range(4):
            if s: e(f"v_xor_b32 v{t2}, {4*s}, v{t0}")
            e(f"v_lshl_add_u32 v{vKr+s}, v{t2 if s else t0}, 4, v{t1}")
        e(f"s_lshl_b32 s{s_t0}, s{s_sw}, 9")
        e(f"v_lshl_add_u32 v{vOw}, v{m}, 5, s{s_t0}")
        e(f"v_lshl_add_u32 v{vOw}, v{kg}, 4, v{vOw}")
        e(f"s_lshl_b32 s{s_t0}, s{s_sw}, 4")
        e(f"v_mov_b32 v{vMw}, s{s_t0}")
        e(f"v_and_b32 v{t0}, 7, v0")
        e(f"s_lshl_b32 s{s_t0}, s{s_h}, 13")
        e(f"s_lshl_b32 s{s_t1}, s{s_j1}, 12")
        e(f"s_add_u32 s{s_t0}, s{s_t0}, s{s_t1}")
        e(f"s_lshr_b32 s{s_t1}, s{s_sw}, 1")
        e(f"s_lshl_b32 s{s_t1}, s{s_t1}, 10")
        e(f"s_add_u32 s{s_t0}, s{s_t0}, s{s_t1}")
        e(f"s_add_u32 s{s_t0}, s{s_t0}, {ABASE}")
        e(f"v_lshl_add_u32 v{vAp}, v{lane}, 4, s{s_t0}")
        e(f"v_lshrrev_b32 v{t1}, 7, v{bl}")
        e(f"v_lshl_add_u32 v{vMp}, v{t0}, 4, v{t1}")
        e(f"s_lshl_b32 s{s_t0}, s{s_h}, 7")
        e(f"s_add_u32 s{s_t0}, s{s_t0}, {MLBASE}")
        e(f"v_add_u32 v{vMp}, s{s_t0}, v{vMp}")
        e(f"s_mul_i32 s{s_t0}, s{s_sw}, {SPS}")
        e(f"v_lshl_add_u32 v{vL}, v{lane}, 4, s{s_t0}")
        e(f"v_mul_u32_u24 v{vSr}, {SPS}, v{t0}")
        e(f"v_lshrrev_b32 v{t1}, 3, v{lane}")
        e(f"s_lshl_b32 s{s_t0}, s{s_sw}, 3")
        e(f"v_add_u32 v{t1}, s{s_t0}, v{t1}")
        e(f"v_lshl_add_u32 v{vSr}, v{t1}, 4, v{vSr}")
        e(f"v_and_b32 v{t2}, 15, v{t1}")
        e(f"v_bfe_u32 v{t3}, v{t1}, 4, 1")
        e(f"v_lshl_add_u32 v{t2}, v{t2}, 1, v{t3}")
        e(f"v_lshrrev_b32 v{t3}, 5, v{t1}")
        e(f"v_lshl_add_u32 v{t2}, v{t3}, 7, v{t2}")
        e(f"s_lshl_b32 s{s_t0}, s{s_cb}, 15")
        e(f"s_lshl_b32 s{s_t1}, s{s_h}, 5")
        e(f"s_add_u32 s{s_t0}, s{s_t0}, s{s_t1}")
        e(f"s_lshl_b32 s{s_t1}, s{s_j1}, 4")
        e(f"s_add_u32 s{s_t0}, s{s_t0}, s{s_t1}")
        e(f"s_add_u32 s{s_t0}, s{s_t0}, {BIN}")
        e(f"v_lshl_add_u32 v{vSc}, v{t2}, 10, s{s_t0}")
        e(f"v_cmp_ne_u32 {sr(sM[1],2)}, 0, v{bl}")
        e(f"s_bitcmp1_b32 s{s_sw}, 0")
        e(f"s_cselect_b64 {sr(s_par,2)}, -1, 0")
        tagpair(vTc, vTd, sM[1])
        e(f"v_mov_b32 v{mw+2}, 1"); e(f"v_mov_b32 v{mw+3}, 1")
    kread_done = False
    dn = sched or [vd]*16
    first_wait = min(n for n in range(16) if n >= dn[n])
    for n in range(16):
        vd = dn[n]
        if n == first_wait: prep()
        if n < 8:
            e(f"s_xor_b32 m0, s{s_m0b}, {n*1024}")
            e(f"s_xor_b32 s{s_so}, s{s_cK}, {n*1024}")
            if n >= vd: e(f"s_waitcnt vmcnt({vd-1})")
            e(f"buffer_load_dwordx4 v{vKa+n%4}, {sr(srdA,4)}, s{s_so} offen{fK} lds")
        else:
            i = n - 8
            e(f"s_xor_b32 s{s_so}, s{s_cV}, {(i//4)*4096+(i%4)*256}")
            if n >= vd: e(f"s_waitcnt vmcnt({vd-1})")
            e(f"buffer_load_dwordx4 {vr(Vf+i*4,4)}, v{vV}, {sr(srdB,4)}, s{s_so} offen{fV}")
            if n == 8: stamp()
        if n - (vd - 1) >= 8 and not kread_done:
            kread_done = True
            for u in range(2):
                for s in range(4): e(f"ds_read_b128 {vr(Kf+(u*4+s)*4,4)}, v{vKr+s} offset:{u*4096}")
    if not kread_done:
        post_kread = True
    else:
        post_kread = False
    e(f"global_load_dwordx4 {vr(wo,4)}, v{vWo}, {sr(sWO,2)}{fW}")
    e(f"global_load_dwordx4 {vr(wo+4,4)}, v{vWo}, {sr(sWO,2)} offset:1024{fW}")
    if post_kread:
        e("s_waitcnt vmcnt(10)")
        for u in range(2):
            for s in range(4): e(f"ds_read_b128 {vr(Kf+(u*4+s)*4,4)}, v{vKr+s} offset:{u*4096}")
    stamp()
    e(f"s_mov_b32 s{s_cnt}, {spin*16}")
    g.lab("L_wq")
    e(f"ds_read_b32 v{fv}, v{vZ} offset:{L_FL}")
    for s in range(4): e(f"ds_read_b128 {vr(qf+4*s,4)}, v{vQr} offset:{L_Q+64*s}")
    e("s_waitcnt lgkmcnt(0)")
    e(f"v_cmp_ne_u32 vcc, 1, v{fv}")
    e("s_cbranch_vccz L_wq_ok")
    e("s_sleep 2")
    e(f"s_sub_u32 s{s_cnt}, s{s_cnt}, 1")
    e(f"s_cmp_lg_u32 s{s_cnt}, 0")
    e("s_cbranch_scc1 L_wq")
    g.lab("L_wq_ok")
    stamp()
    for s in range(4):
        mfma(D0, Kf+4*s, qf+4*s, None if s == 0 else D0)
        mfma(D1, Kf+16+4*s, qf+4*s, None if s == 0 else D1)
    e("s_nop 7")
    assert D1 == D0 + 4
    S = D0
    for i in range(0, 8, 2): rbf2(S+i, S+i+1, t0)
    for i in range(8): e(f"v_mul_f32 v{S+i}, s{s_scale}, v{S+i}")
    for i in range(0, 8, 2): rbf2(S+i, S+i+1, t0)
    e(f"v_max3_f32 v{mw}, v{S}, v{S+1}, v{S+2}")
    e(f"v_max3_f32 v{mw}, v{mw}, v{S+3}, v{S+4}")
    e(f"v_max3_f32 v{mw}, v{mw}, v{S+5}, v{S+6}")
    e(f"v_max_f32 v{mw}, v{mw}, v{S+7}")
    redgrp("v_max_f32", mw, t0)
    for i in range(8): e(f"v_sub_f32 v{S+i}, v{S+i}, v{mw}")
    for i in range(8): e(f"v_mul_f32 v{S+i}, s{s_l2e}, v{S+i}")
    for i in range(8): e(f"v_exp_f32 v{S+i}, v{S+i}")
    e(f"v_add_f32 v{lw}, v{S}, v{S+1}")
    for i in range(2, 8): e(f"v_add_f32 v{lw}, v{lw}, v{S+i}")
    redgrp("v_add_f32", lw, t0)
    e("s_mov_b64 exec, 1")
    e(f"ds_write_b128 v{vMw}, {vr(mw,4)} offset:{L_ML}")
    e("s_mov_b64 exec, -1")
    for i in range(8): afrag(Kf+4*i, S+i)
    e(f"s_mov_b32 s{s_cnt}, {spin}")
    stamp()
    for i in range(8):
        e(f"s_waitcnt vmcnt({9-i})")
        mfma(D0, Kf+4*i, Vf+4*i, None if i == 0 else D0)
    stamp()
    e(f"global_load_dwordx2 {vr(ml,2)}, v{vMp}, {sr(sWS,2)} sc1")
    e("s_nop 5")
    e("s_mov_b32 exec_hi, 0")
    e(f"ds_write_b128 v{vOw}, {vr(D0,4)} offset:{L_OP}")
    e("s_mov_b32 exec_hi, -1")
    e("s_waitcnt lgkmcnt(0)")
    e("s_barrier")
    e("s_branch L_pml_c")
    g.lab("L_pml")
    e(f"global_load_dwordx2 {vr(ml,2)}, v{vMp}, {sr(sWS,2)} sc1")
    g.lab("L_pml_c")
    e("s_waitcnt vmcnt(0)")
    e(f"v_xor_b32 v{ml}, v{ml}, v{vTc}")
    e(f"v_xor_b32 v{ml+1}, v{ml+1}, v{vTd}")
    e(f"v_or_b32 v{t0}, v{ml}, v{ml+1}")
    poll_tail(t0, "L_pml", slp)
    stamp()
    e(f"v_mov_b32 v{t0}, v{ml}")
    red8("v_max_f32", [t0])
    e(f"v_sub_f32 v{t0}, v{ml}, v{t0}")
    e(f"v_mul_f32 v{t0}, s{s_l2e}, v{t0}")
    e(f"v_exp_f32 v{t0}, v{t0}")
    e(f"global_load_dwordx4 {vr(op,4)}, v{vAp}, {sr(sWS,2)} sc1")
    e(f"v_mul_f32 v{t1}, v{t0}, v{ml+1}")
    red8("v_add_f32", [t1])
    e(f"v_rcp_f32 v{t1}, v{t1}")
    e(f"s_mov_b32 s{s_cnt}, {spin}")
    e(f"v_mul_f32 v{t3}, v{t0}, v{t1}")
    e("s_branch L_pa2")
    g.lab("L_pa")
    e(f"global_load_dwordx4 {vr(op,4)}, v{vAp}, {sr(sWS,2)} sc1")
    g.lab("L_pa2")
    e("s_waitcnt vmcnt(0)")
    for r in range(4): e(f"v_xor_b32 v{op+r}, s{sT[r]}, v{op+r}")
    e(f"v_or_b32 v{t0}, v{op}, v{op+1}")
    e(f"v_or3_b32 v{t0}, v{t0}, v{op+2}, v{op+3}")
    poll_tail(t0, "L_pa", slp)
    stamp()
    e(f"v_cndmask_b32 v{op}, v{op}, v{op+2}, {sr(s_par,2)}")
    e(f"v_cndmask_b32 v{op+1}, v{op+1}, v{op+3}, {sr(s_par,2)}")
    e(f"v_mul_f32 v{op}, v{op}, v{t3}")
    e(f"v_mul_f32 v{op+1}, v{op+1}, v{t3}")
    red8("v_add_f32", [op, op+1])
    afrag(A0, op); afrag(A1, op+1)
    e("s_nop 0")
    mfma(D0, A0, wo, None)
    mfma(D0, A1, wo+4, D0)
    e("s_nop 7")
    e(f"ds_write_b128 v{vL}, {vr(D0,4)} offset:{L_SP}")
    e("s_waitcnt lgkmcnt(0)")
    e("s_barrier")
    stamp()
    e(f"ds_read_b128 {vr(D1,4)}, v{vSr} offset:{L_SP}")
    e("s_waitcnt lgkmcnt(0)")
    red8("v_add_f32", [D1+i for i in range(4)])
    tag4(D1)
    e("s_mov_b32 exec_lo, 0x01010101"); e("s_mov_b32 exec_hi, 0x01010101")
    e(f"global_store_dwordx4 v{vSc}, {vr(D1,4)}, {sr(sWS,2)} sc1")
    stamp()
    dump_stamps(Kf)
    g.lab("L_end")
    e("s_endpgm")

    nv = (g.maxv + 7) // 8 * 8
    ldsb = L_K + 65536 if kdma else L_K
    hdr = open(os.path.join(os.path.dirname(os.path.abspath(__file__)), "..", "cdna_kernels", NAME + ".s.ref")).read().split("\n")
    top = [l for l in hdr if l.startswith(";") and "@launch" not in l and "Override" not in l and "grid=ceil" not in l]
    out = top + [f"; @launch grid=(256,1,1) block=({NW*64},1,1) lds={ldsb}",
        '.amdgcn_target "amdgcn-amd-amdhsa--gfx950"', ".text", f".globl {NAME}_kernel", ".p2align 8",
        f".type {NAME}_kernel,@function", f"{NAME}_kernel:"] + g.L + [
        '.section .rodata,"a"', ".p2align 6", f".amdhsa_kernel {NAME}_kernel",
        f"  .amdhsa_next_free_vgpr {nv}", "  .amdhsa_next_free_sgpr 102", f"  .amdhsa_accum_offset {nv}",
        "  .amdhsa_group_segment_fixed_size 0", "  .amdhsa_kernarg_size 104", "  .amdhsa_user_sgpr_count 2",
        "  .amdhsa_user_sgpr_kernarg_segment_ptr 1", "  .amdhsa_system_sgpr_workgroup_id_x 1", ".end_amdhsa_kernel", ""]
    return "\n".join(out)

if __name__ == "__main__":
    import argparse
    ap = argparse.ArgumentParser()
    ap.add_argument("-o", default=None)
    ap.add_argument("--diag", action="store_true")
    ap.add_argument("--opt", default="")
    a = ap.parse_args()
    kw = eval("dict(" + a.opt + ")")
    txt = gen(diag=a.diag, **kw)
    path = a.o or os.path.join(os.path.dirname(os.path.abspath(__file__)), "..", "cdna_kernels", NAME + ".s")
    open(path, "w").write(txt)
    print("wrote", path, len(txt.split("\n")), "lines", [l for l in txt.split("\n") if "next_free_vgpr" in l])
```

```python
import sys, os
NAME = "recurrent_scan__sliding_block_cached__dense_activation_squared_relu__decode"

class G:
    def __init__(self):
        self.L = []; self.nv = 0; self.maxv = 0
    def e(self, s): self.L.append("    " + s)
    def lab(self, s): self.L.append(s + ":")
    def reset(self, n): self.nv = n
    def v(self, n=1, al=1):
        if n >= 4: al = max(al, 4) if n % 4 == 0 else max(al, 2)
        elif n >= 2: al = max(al, 2)
        self.nv = (self.nv + al - 1) // al * al
        r = self.nv; self.nv += n
        self.maxv = max(self.maxv, self.nv)
        return r

def vr(b, n): return f"v[{b}:{b+n-1}]"
def sr(b, n): return f"s[{b}:{b+n-1}]"

QBASE = 0x1000
HBASE = QBASE + 0x40000
ABASE = HBASE + 0x20000
MLBASE = ABASE + 0x40000
IDBASE = MLBASE + 0x1000
FIN = IDBASE + 0x1000
BIN = FIN + 0x40000
DIAG = 0x400000
L_Q = 0; L_FL = 512; L_ML = 640; L_OP = 1024; L_SP = 5120; SPS = 1024; L_K = 16384
NW = 10

SCALE = 0x3DB504F3
LOG2E = 0x3FB8AA3B
EPS = 0x3727C5AC

def gen(diag=False, fK="nt", fV="nt", fW="nt", kdma=True, bar0=True, fast=True, prio=True, pf=True, gate=True, vd=4, slp=1, perm=True, fmap=True, sched=None, bp=1, xp='', early=0, wol=1, burst=True, spin=20000):
    g = G(); e = g.e
    fl = lambda f: (" " + f) if f else ""
    fK, fV, fW = fl(fK), fl(fV), fl(fW)
    sX, sK, sV, sWQ, sWO, sW1, sB1, sW2, sB2, sOUT, sWS = 16, 18, 20, 22, 24, 28, 30, 32, 34, 36, 40
    s_wv, s_h, s_j, s_t0, s_t1, s_E, s_cnt = 3, 4, 5, 6, 7, 8, 9
    s_j1, s_cb, s_wgi = 10, 11, 12
    s_g = 43
    sT = [44, 45, 46, 47]
    s_hi, s_scale, s_l2e, s_fast = 48, 49, 50, 51
    srdA, srdB, srdC = 52, 56, 60
    sM = [64, 66, 68, 70]
    sID = 64
    s_T, s_idw, s_ido = 26, 38, 27
    sG = 100
    ST0 = 72
    nst = [0]
    def stamp():
        if diag:
            e(f"s_memrealtime {sr(ST0+2*nst[0],2)}")
            nst[0] += 1
            assert nst[0] <= 14
    def dump_stamps(vt):
        if not diag: return
        e("s_mov_b64 exec, -1")
        e("s_waitcnt vmcnt(0) lgkmcnt(0)")
        e(f"s_getreg_b32 s{s_t0}, hwreg(HW_REG_XCC_ID)")
        e(f"s_getreg_b32 s{s_t1}, hwreg(HW_REG_HW_ID)")
        for i in range(14):
            src = f"s{ST0+2*i}" if i < nst[0] else "0"
            e(f"v_mov_b32 v{vt+i}, {src}")
        e(f"v_mov_b32 v{vt+14}, s{s_t0}")
        e(f"v_mov_b32 v{vt+15}, s{s_t1}")
        e(f"s_mul_i32 s{s_t0}, s2, {NW}")
        e(f"s_add_u32 s{s_t0}, s{s_t0}, s{s_wv}")
        e(f"s_lshl_b32 s{s_t0}, s{s_t0}, 6")
        e(f"s_add_u32 s{s_t0}, s{s_t0}, {DIAG}")
        e(f"v_mov_b32 v{vt+16}, s{s_t0}")
        e("s_mov_b64 exec, 1")
        for i in range(4):
            e(f"global_store_dwordx4 v{vt+16}, {vr(vt+4*i,4)}, {sr(sWS,2)} offset:{16*i}")
    def dpp(op, d, a, b, ctl):
        e(f"{op}_dpp v{d}, v{a}, v{b} {ctl} row_mask:0xf bank_mask:0xf")
    X1, X2, HM, RM = "quad_perm:[1,0,3,2]", "quad_perm:[2,3,0,1]", "row_half_mirror", "row_mirror"
    def red8(op, regs):
        for ctl in (X1, X2, HM):
            pad = max(0, 2 - (len(regs) - 1))
            if pad: e(f"s_nop {pad-1}")
            for r in regs: dpp(op, r, r, r, ctl)
    def redgrp(op, r, tmp):
        e(f"v_mov_b32 v{tmp}, v{r}"); e("s_nop 1")
        e(f"v_permlane16_swap_b32 v{r}, v{tmp}")
        e(f"{op} v{r}, v{r}, v{tmp}")
        e(f"v_mov_b32 v{tmp}, v{r}"); e("s_nop 1")
        e(f"v_permlane32_swap_b32 v{r}, v{tmp}")
        e(f"{op} v{r}, v{r}, v{tmp}")
    def rbf(d, a):
        e(f"v_cvt_pk_bf16_f32 v{d}, v{a}, v{a}")
        e(f"v_and_b32 v{d}, s{s_hi}, v{d}")
    def rbf2(a, b, tmp):
        e(f"v_cvt_pk_bf16_f32 v{tmp}, v{a}, v{b}")
        e(f"v_lshlrev_b32 v{a}, 16, v{tmp}")
        e(f"v_and_b32 v{b}, s{s_hi}, v{tmp}")
    def mfma(d, a, b, c):
        cc = "0" if c is None else vr(c, 4)
        e(f"v_mfma_f32_16x16x32_bf16 {vr(d,4)}, {vr(a,4)}, {vr(b,4)}, {cc}")
    def srd(d, p, n):
        e(f"s_mov_b32 s{d}, s{p}"); e(f"s_mov_b32 s{d+1}, s{p+1}")
        e(f"s_mov_b32 s{d+2}, {n}"); e(f"s_mov_b32 s{d+3}, 0x20000")

    g.reset(1)
    lane, m, kg = g.v(), g.v(), g.v()
    msk = g.v(4)
    vFF = g.v()
    t0, t1, t2, t3 = g.v(), g.v(), g.v(), g.v()
    bl, m16 = g.v(), g.v()
    common_end = g.nv
    e("s_cmp_ge_u32 s2, 256")
    e("s_cbranch_scc1 L_end")
    e(f"s_load_dwordx16 {sr(16,16)}, s[0:1], 0")
    e(f"s_load_dwordx8 {sr(32,8)}, s[0:1], 64")
    e(f"s_load_dwordx2 {sr(sWS,2)}, s[0:1], 96")
    stamp()
    if diag:
        for i in range(1, 14): e(f"s_mov_b32 s{ST0+2*i}, 0")
    e(f"v_lshrrev_b32 v{t0}, 6, v0")
    e(f"v_and_b32 v{lane}, 63, v0")
    e(f"v_readfirstlane_b32 s{s_wv}, v{t0}")
    e(f"v_and_b32 v{m}, 15, v0")
    e(f"v_bfe_u32 v{kg}, v0, 4, 2")
    e(f"s_lshr_b32 s{s_h}, s2, 6")
    e(f"s_lshl_b32 s{s_h}, s{s_h}, 3")
    e(f"s_and_b32 s{s_t0}, s2, 7")
    e(f"s_add_u32 s{s_h}, s{s_h}, s{s_t0}")
    e(f"s_bfe_u32 s{s_j}, s2, 0x30003")
    e(f"s_and_b32 s{s_j1}, s{s_j}, 1")
    e(f"s_lshr_b32 s{s_cb}, s{s_j}, 1")
    e(f"s_lshl_b32 s{s_wgi}, s{s_h}, 3")
    e(f"s_add_u32 s{s_wgi}, s{s_wgi}, s{s_j}")
    if fmap:
        e(f"s_lshl_b32 s{s_g}, s{s_t0}, 2")
        e(f"s_lshr_b32 s{s_t0}, s2, 6")
        e(f"s_add_u32 s{s_g}, s{s_g}, s{s_t0}")
    else:
        e(f"s_mov_b32 s{s_g}, s{s_h}")
    if "noffn" in xp: e(f"s_mov_b32 s{s_g}, 31")
    e(f"s_mov_b32 s{s_hi}, 0xffff0000")
    e(f"s_mov_b32 s{s_scale}, {SCALE:#x}")
    e(f"s_mov_b32 s{s_l2e}, {LOG2E:#x}")
    e(f"v_bfe_u32 v{bl}, v0, 3, 1")
    e(f"v_lshlrev_b32 v{bl}, 10, v{bl}")
    e(f"v_lshlrev_b32 v{m16}, 4, v{m}")
    e(f"s_cmp_ge_u32 s{s_wv}, 2")
    e("s_cbranch_scc1 L_stream")

    def masks_and_tags(tags=True):
        e(f"v_bfe_u32 v{t0}, v{m}, 1, 2")
        e(f"v_and_b32 v{t1}, 1, v{m}")
        e(f"v_lshlrev_b32 v{t1}, 4, v{t1}")
        e(f"v_mov_b32 v{t2}, 0xffff")
        e(f"v_lshlrev_b32 v{t1}, v{t1}, v{t2}")
        for i in range(4): e(f"v_cmp_eq_u32 {sr(sM[i],2)}, {i}, v{t0}")
        e(f"v_mov_b32 v{vFF}, 0xffffff00")
        for i in range(4): e(f"v_cndmask_b32 v{msk+i}, 0, v{t1}, {sr(sM[i],2)}")
        if tags: do_tags()
    def do_tags():
        e("s_waitcnt lgkmcnt(0)")
        e(f"s_mul_i32 s{s_t0}, s{s_E}, 0x9e3779b1")
        e(f"s_add_u32 s{s_t0}, s{s_t0}, 0x7f4a7c15")
        e(f"s_add_u32 s{sT[0]}, s{s_E}, 1")
        e(f"s_and_b32 s{sT[0]}, s{sT[0]}, 0xff")
        e(f"s_bfe_u32 s{sT[1]}, s{s_t0}, 0x80008")
        e(f"s_bfe_u32 s{sT[2]}, s{s_t0}, 0x80010")
        e(f"s_bfe_u32 s{sT[3]}, s{s_t0}, 0x80018")
        e(f"s_and_b32 s{s_T}, s{s_t0}, 0xffffff00")
        e(f"s_or_b32 s{s_T}, s{s_T}, s{sT[0]}")
        e(f"s_getreg_b32 s{s_t1}, hwreg(HW_REG_XCC_ID, 0, 4)")
        e(f"s_and_b32 s{s_idw}, s{s_T}, -16")
        e(f"s_or_b32 s{s_idw}, s{s_idw}, s{s_t1}")
        e(f"s_mov_b32 s{s_idw+1}, s{s_idw}")
        e(f"s_lshl_b32 s{s_ido}, s{s_h}, 7")
        e(f"s_add_u32 s{s_ido}, s{s_ido}, {IDBASE}")
    def id_issue():
        e(f"s_load_dwordx8 {sr(sID,8)}, {sr(sWS,2)}, s{s_ido} glc")
    def id_check():
        for i in range(4): e(f"s_xor_b64 {sr(sID+2*i,2)}, {sr(sID+2*i,2)}, {sr(s_idw,2)}")
        e(f"s_or_b64 {sr(sID,2)}, {sr(sID,2)}, {sr(sID+2,2)}")
        e(f"s_or_b64 {sr(sID+4,2)}, {sr(sID+4,2)}, {sr(sID+6,2)}")
        e(f"s_or_b64 {sr(sID,2)}, {sr(sID,2)}, {sr(sID+4,2)}")
        e(f"s_cselect_b32 s{s_fast}, 0, 1")
    def smem_gate(lab, base, shift, stride, off, tagi):
        if not gate: return
        e(f"s_lshl_b32 s{s_t0}, s{s_h}, {shift}")
        e(f"s_add_u32 s{s_t0}, s{s_t0}, {base+off}")
        e(f"s_add_u32 s{sG}, s{sWS}, s{s_t0}")
        e(f"s_addc_u32 s{sG+1}, s{sWS+1}, 0")
        e(f"s_movk_i32 s{s_t1}, 200")
        g.lab(lab)
        for p in range(8): e(f"s_load_dword s{sID+p}, {sr(sG,2)}, {p*stride} glc")
        e(f"s_sub_u32 s{s_t1}, s{s_t1}, 1")
        e(f"s_cbranch_scc1 {lab}_to")
        e("s_waitcnt lgkmcnt(0)")
        for p in range(8): e(f"s_xor_b32 s{sID+p}, s{sID+p}, s{sT[tagi]}")
        e(f"s_or_b64 {sr(sID,2)}, {sr(sID,2)}, {sr(sID+2,2)}")
        e(f"s_or_b64 {sr(sID+4,2)}, {sr(sID+4,2)}, {sr(sID+6,2)}")
        e(f"s_or_b64 {sr(sID,2)}, {sr(sID,2)}, {sr(sID+4,2)}")
        e(f"s_or_b32 s{sID}, s{sID}, s{sID+1}")
        e(f"s_and_b32 s{sID}, s{sID}, 0xff")
        e(f"s_cbranch_scc1 {lab}")
        g.lab(f"{lab}_to")
        e("s_waitcnt lgkmcnt(0)")
    def afrag(dst, val):
        e(f"v_cvt_pk_bf16_f32 v{dst+3}, v{val}, v{val}")
        for i in range(4): e(f"v_and_b32 v{dst+i}, v{msk+i}, v{dst+3}")
    def tag4(d):
        for i in range(4): e(f"v_and_or_b32 v{d+i}, v{d+i}, v{vFF}, s{sT[i]}")
    def poll_tail(acc, lab, sleep=0):
        e(f"v_and_b32 v{acc}, 0xff, v{acc}")
        e(f"v_cmp_ne_u32 vcc, 0, v{acc}")
        e(f"s_cbranch_vccz {lab}_ok")
        if sleep: e(f"s_sleep {sleep}")
        e(f"s_sub_u32 s{s_cnt}, s{s_cnt}, 1")
        e(f"s_cmp_lg_u32 s{s_cnt}, 0")
        e(f"s_cbranch_scc1 {lab}")
        g.lab(f"{lab}_ok")
    npub = [0]
    def publish(vaddr, d, slow=False, n4=4):
        if slow or not fast:
            e(f"global_store_dwordx{n4} v{vaddr}, {vr(d,n4)}, {sr(sWS,2)} sc1"); return
        n = npub[0]; npub[0] += 1
        e(f"s_cmp_eq_u32 s{s_fast}, 0")
        e(f"s_cbranch_scc1 L_ps{n}")
        e(f"global_store_dwordx{n4} v{vaddr}, {vr(d,n4)}, {sr(sWS,2)}")
        e(f"s_branch L_pd{n}")
        g.lab(f"L_ps{n}")
        e(f"global_store_dwordx{n4} v{vaddr}, {vr(d,n4)}, {sr(sWS,2)} sc1")
        g.lab(f"L_pd{n}")
    def sum_n(base, n):
        step = 1
        while step < n:
            for i in range(0, n, 2*step):
                for r in range(4):
                    e(f"v_add_f32 v{base+4*i+r}, v{base+4*i+r}, v{base+4*(i+step)+r}")
            step *= 2
    def tagpair(da, db, cond):
        e(f"v_mov_b32 v{t0}, s{sT[0]}"); e(f"v_mov_b32 v{t1}, s{sT[1]}")
        e(f"v_mov_b32 v{t2}, s{sT[2]}"); e(f"v_mov_b32 v{t3}, s{sT[3]}")
        e(f"v_cndmask_b32 v{da}, v{t0}, v{t2}, {sr(cond,2)}")
        e(f"v_cndmask_b32 v{db}, v{t1}, v{t3}, {sr(cond,2)}")

    vX, vXr, vW, vPub, vl16, c2, vPf = [g.v() for _ in range(7)]
    xd = g.v(8); xl = g.v(8); xr = g.v(8)
    W = g.v(64); AF = g.v(8); D = g.v(4)
    aux_end = g.nv
    s_str, s_off, s_lim = 13, 14, 15
    if prio: e("s_setprio 3")
    if pf:
        e(f"s_getpc_b64 {sr(sG,2)}")
        g.lab("L_pc")
        e(f"s_lshr_b32 s{s_t0}, s2, 3")
        e(f"s_lshl_b32 s{s_t0}, s{s_t0}, 9")
        e(f"s_lshl_b32 s{s_t1}, s{s_wv}, 8")
        e(f"s_add_u32 s{s_t0}, s{s_t0}, s{s_t1}")
        e(f"v_lshl_add_u32 v{vPf}, v{lane}, 7, s{s_t0}")
        e(f"v_min_u32 v{vPf}, L_end-L_pc, v{vPf}")
        e("s_mov_b64 exec, 3")
        e(f"global_load_dword v{vPf}, v{vPf}, {sr(sG,2)}")
        e("s_mov_b64 exec, -1")
    e(f"v_lshlrev_b32 v{t0}, 2, v{lane}")
    e(f"v_mov_b32 v{t1}, 0")
    e(f"ds_write_b32 v{t0}, v{t1} offset:{L_FL}")
    e(f"s_movk_i32 s{s_str}, 2752")
    e(f"s_movk_i32 s{s_t1}, 96")
    e(f"s_cmp_eq_u32 s{s_wv}, 0")
    e(f"s_cmovk_i32 s{s_str}, 8192")
    e(f"s_cmovk_i32 s{s_t1}, 256")
    e(f"s_cselect_b32 s{s_lim}, s{s_h}, s{s_g}")
    e(f"s_lshl_b32 s{srdA+2}, s{s_str}, 9")
    e(f"s_mul_i32 s{s_t1}, s{s_t1}, s{s_lim}")
    e(f"s_mul_i32 s{s_lim}, s{s_g}, 6")
    e(f"s_sub_i32 s{s_lim}, 172, s{s_lim}")
    e(f"s_min_i32 s{s_lim}, s{s_lim}, 6")
    e(f"s_cmp_eq_u32 s{s_wv}, 0")
    e(f"s_cselect_b32 s{s_lim}, 16, s{s_lim}")
    e(f"s_mov_b32 s{srdA+3}, 0x20000")
    e(f"v_and_b32 v{t0}, 7, v0")
    e(f"v_lshl_add_u32 v{vX}, v{t0}, 5, v{bl}")
    e(f"v_lshl_add_u32 v{vX}, v{kg}, 8, v{vX}")
    e(f"s_lshl_b32 s{s_t0}, s{s_j}, 6")
    e(f"v_lshl_add_u32 v{t1}, v{kg}, 4, s{s_t0}")
    e(f"v_lshl_add_u32 v{vXr}, v{t1}, 1, v{bl}")
    e(f"v_mul_u32_u24 v{vW}, s{s_str}, v{t1}")
    e(f"v_add3_u32 v{vW}, v{vW}, v{m16}, s{s_t1}")
    e(f"v_cmp_gt_i32 vcc, s{s_lim}, v{m}")
    e(f"v_bfrev_b32 v{t2}, 1")
    e(f"s_mov_b32 s{s_off}, 0")
    e(f"s_cmp_eq_u32 s{s_wv}, 0")
    e(f"v_cndmask_b32 v{vW}, v{t2}, v{vW}, vcc")
    e("s_waitcnt lgkmcnt(0)")
    e(f"s_cselect_b32 s{srdA}, s{sWQ}, s{sW1}")
    e(f"s_cselect_b32 s{srdA+1}, s{sWQ+1}, s{sW1+1}")
    e(f"s_load_dword s{s_E}, {sr(sWS,2)}, 0")
    stamp()
    e(f"global_load_dwordx4 {vr(xd,4)}, v{vX}, {sr(sX,2)}")
    e(f"global_load_dwordx4 {vr(xd+4,4)}, v{vX}, {sr(sX,2)} offset:16")
    e(f"global_load_dwordx4 {vr(xr,4)}, v{vXr}, {sr(sX,2)}")
    e(f"global_load_dwordx4 {vr(xr+4,4)}, v{vXr}, {sr(sX,2)} offset:16")
    for t in range(16):
        e(f"buffer_load_dwordx4 {vr(W+4*t,4)}, v{vW}, {sr(srdA,4)}, s{s_off} offen{fW}")
        if t < 15: e(f"s_add_u32 s{s_off}, s{s_off}, s{s_str}")
    e("s_barrier")
    stamp()
    e(f"v_lshlrev_b32 v{vl16}, 4, v{lane}")
    e(f"v_and_b32 v{t1}, 1, v{kg}")
    e(f"v_lshl_add_u32 v{c2}, v{m}, 1, v{t1}")
    e(f"s_cmp_eq_u32 s{s_wv}, 0")
    e("s_cbranch_scc0 L_fx")
    vFo, vB2o, xo, b2v, gv, vIn, vQp, vQw = [g.v() for _ in range(8)]
    vSc, vHpa, vHpb, vTa, vTb, b1b = [g.v() for _ in range(6)]
    b1a = g.v(2); w2 = g.v(24)
    s_fr = 42
    e(f"s_lshl_b32 s{s_t0}, s{s_wgi}, 10")
    e(f"s_add_u32 s{s_t0}, s{s_t0}, {QBASE}")
    e(f"v_add_u32 v{vPub}, s{s_t0}, v{vl16}")
    e("s_branch L_ln")
    g.lab("L_fx")
    e(f"v_lshl_add_u32 v{vPub}, v{kg}, 7, v{m16}")
    e(f"s_lshl_b32 s{s_t0}, s{s_wgi}, 9")
    e(f"s_add_u32 s{s_t0}, s{s_t0}, {HBASE}")
    e(f"v_add_u32 v{vPub}, s{s_t0}, v{vPub}")
    g.lab("L_ln")
    masks_and_tags(False)
    e("s_waitcnt vmcnt(18)")
    stamp()
    for i in range(8):
        e(f"v_lshlrev_b32 v{xl+i}, 16, v{xd+i}")
        e(f"v_and_b32 v{xd+i}, s{s_hi}, v{xd+i}")
    e(f"v_add_f32 v{t0}, v{xl}, v{xd}")
    e(f"v_add_f32 v{t1}, v{xl+1}, v{xd+1}")
    for i in range(2, 8, 2):
        e(f"v_add_f32 v{t0}, v{t0}, v{xl+i}")
        e(f"v_add_f32 v{t1}, v{t1}, v{xl+i+1}")
        e(f"v_add_f32 v{t0}, v{t0}, v{xd+i}")
        e(f"v_add_f32 v{t1}, v{t1}, v{xd+i+1}")
    e(f"v_add_f32 v{t0}, v{t0}, v{t1}")
    red8("v_add_f32", [t0]); redgrp("v_add_f32", t0, t1)
    e(f"v_mul_f32 v{t0}, 0x3b000000, v{t0}")
    for i in range(8):
        e(f"v_sub_f32 v{xl+i}, v{xl+i}, v{t0}")
        e(f"v_sub_f32 v{xd+i}, v{xd+i}, v{t0}")
    e(f"v_mul_f32 v{t1}, v{xl}, v{xl}")
    e(f"v_mul_f32 v{t2}, v{xd}, v{xd}")
    for i in range(1, 8):
        e(f"v_fmac_f32 v{t1}, v{xl+i}, v{xl+i}")
        e(f"v_fmac_f32 v{t2}, v{xd+i}, v{xd+i}")
    e(f"v_add_f32 v{t1}, v{t1}, v{t2}")
    red8("v_add_f32", [t1]); redgrp("v_add_f32", t1, t2)
    e(f"v_mul_f32 v{t1}, 0x3b000000, v{t1}")
    rbf2(t0, t1, t2)
    e(f"v_add_f32 v{t1}, {EPS:#x}, v{t1}")
    rbf(t1, t1)
    e(f"v_sqrt_f32 v{t1}, v{t1}")
    e("s_nop 0")
    rbf(t1, t1)
    e(f"v_rcp_f32 v{t1}, v{t1}")
    e("s_waitcnt vmcnt(16)")
    for i in range(8):
        e(f"v_lshlrev_b32 v{xl+i}, 16, v{xr+i}")
        e(f"v_and_b32 v{xd+i}, s{s_hi}, v{xr+i}")
        e(f"v_sub_f32 v{xl+i}, v{xl+i}, v{t0}")
        e(f"v_sub_f32 v{xd+i}, v{xd+i}, v{t0}")
        rbf2(xl+i, xd+i, t2)
        e(f"v_mul_f32 v{xl+i}, v{xl+i}, v{t1}")
        e(f"v_mul_f32 v{xd+i}, v{xd+i}, v{t1}")
    stamp()
    val = lambda t: (xl if t % 2 == 0 else xd) + t // 2
    afrag(AF, val(0))
    for t in range(16):
        if t < 15: afrag(AF + 4*((t+1) % 2), val(t+1))
        else: e("s_nop 1")
        if t % 4 == 0: e(f"s_waitcnt vmcnt({12 - t})")
        mfma(D, AF + 4*(t % 2), W + 4*t, None if t == 0 else D)
    stamp()
    do_tags()
    tag4(D)
    e(f"s_mov_b32 s{s_cnt}, {spin}")
    e(f"s_cmp_eq_u32 s{s_wv}, 0")
    e("s_cbranch_scc0 L_f2")
    nst_split = nst[0]
    P = W
    publish(vPub, D, True)
    stamp()
    e(f"s_lshl_b32 s{s_t0}, s{s_j}, 2")
    e(f"s_add_u32 s{s_t0}, s{s_t0}, s{s_ido}")
    e(f"v_mov_b32 v{t0}, s{s_t0}")
    e(f"v_mov_b32 v{t1}, s{s_idw}")
    e("s_mov_b64 exec, 1")
    e(f"global_store_dword v{t0}, v{t1}, {sr(sWS,2)} sc1")
    e("s_mov_b64 exec, -1")
    vW2a, vW2b = vX, vXr
    vI = g.v(4)
    e(f"s_mul_i32 s{s_fr}, s{s_g}, 48")
    e(f"s_lshl_b32 s{s_t0}, s{s_j1}, 2")
    e(f"s_add_u32 s{s_fr}, s{s_fr}, s{s_t0}")
    e(f"s_lshl_b32 s{s_t0}, s{s_fr}, 10")
    e(f"s_lshl_b32 s{s_t1}, s{s_cb}, 8")
    e(f"s_add_u32 s{s_t0}, s{s_t0}, s{s_t1}")
    e(f"v_lshl_add_u32 v{vW2a}, v{kg}, 13, v{m16}")
    e(f"v_add_u32 v{vW2a}, s{s_t0}, v{vW2a}")
    e(f"v_and_b32 v{t1}, 1, v{kg}")
    e(f"v_cmp_eq_u32 {sr(sM[0],2)}, 1, v{t1}")
    e(f"v_lshrrev_b32 v{t0}, 1, v{kg}")
    e(f"v_lshlrev_b32 v{t3}, 1, v{t1}")
    e(f"v_lshl_add_u32 v{t3}, v{t0}, 3, v{t3}")
    e(f"s_add_u32 s{s_t0}, s{s_t0}, {32*1024}")
    e(f"v_lshl_add_u32 v{vW2b}, v{t3}, 10, v{m16}")
    e(f"v_add_u32 v{vW2b}, s{s_t0}, v{vW2b}")
    srd(srdB, sW2, 1376*1024); srd(srdC, sB1, 2752)
    for t in range(4):
        e(f"buffer_load_dwordx4 {vr(w2+4*t,4)}, v{vW2a}, {sr(srdB,4)}, 0 offen offset:{t*1024}{fW}")
    for t in range(2):
        e(f"buffer_load_dwordx4 {vr(w2+16+4*t,4)}, v{vW2b}, {sr(srdB,4)}, 0 offen offset:{t*1024}{fW}")
    e(f"s_lshl_b32 s{s_t0}, s{s_fr}, 1")
    e(f"v_lshl_add_u32 v{t2}, v{kg}, 4, s{s_t0}")
    e(f"v_lshl_add_u32 v{t3}, v{t3}, 1, s{s_t0}")
    e(f"buffer_load_dwordx2 {vr(b1a,2)}, v{t2}, {sr(srdC,4)}, 0 offen")
    e(f"buffer_load_dword v{b1b}, v{t3}, {sr(srdC,4)}, 0 offen offset:64")
    s_c, s_k = 13, 14
    e(f"s_lshl_b32 s{s_c}, s{s_h}, 1")
    e(f"s_add_u32 s{s_c}, s{s_c}, s{s_j1}")
    e(f"s_and_b32 s{s_k}, s{s_c}, 15")
    e(f"v_lshlrev_b32 v{t1}, 2, v{t1}")
    e(f"v_and_or_b32 v{t1}, v{kg}, 2, v{t1}")
    e(f"v_and_b32 v{t2}, 3, v{lane}")
    e(f"v_lshl_add_u32 v{t1}, v{t2}, 4, v{t1}")
    e(f"s_lshr_b32 s{s_t0}, s{s_c}, 4")
    e(f"s_lshl_b32 s{s_t0}, s{s_t0}, 8")
    e(f"s_and_b32 s{s_t1}, s{s_k}, 3")
    e(f"s_lshl_b32 s{s_t1}, s{s_t1}, 6")
    e(f"s_add_u32 s{s_t0}, s{s_t0}, s{s_t1}")
    e(f"s_and_b32 s{s_t1}, s{s_k}, 4")
    e(f"s_lshl_b32 s{s_t1}, s{s_t1}, 1")
    e(f"s_add_u32 s{s_t0}, s{s_t0}, s{s_t1}")
    e(f"v_add_u32 v{vB2o}, s{s_t0}, v{t1}")
    e(f"s_and_b32 s{s_t1}, s{s_k}, 8")
    e(f"s_lshl_b32 s{s_t1}, s{s_t1}, 7")
    e(f"v_add_u32 v{vFo}, s{s_t1}, v{vB2o}")
    e(f"global_load_ushort v{xo}, v{vFo}, {sr(sX,2)}")
    e(f"global_load_ushort v{b2v}, v{vB2o}, {sr(sB2,2)}")
    e(f"s_lshr_b32 s{s_t0}, s{s_c}, 4")
    e(f"s_lshl_b32 s{s_t0}, s{s_t0}, 16")
    e(f"s_lshl_b32 s{s_t1}, s{s_k}, 6")
    e(f"s_add_u32 s{s_t0}, s{s_t0}, s{s_t1}")
    e(f"s_add_u32 s{s_t0}, s{s_t0}, {FIN}")
    e(f"v_lshl_add_u32 v{vI}, v{t2}, 4, s{s_t0}")
    e(f"v_lshrrev_b32 v{t2}, 2, v{lane}")
    e(f"v_lshl_add_u32 v{vI}, v{t2}, 10, v{vI}")
    for i in range(1, 4): e(f"v_add_u32 v{vI+i}, {i*16384}, v{vI}")
    e(f"s_lshl_b32 s{s_t1}, s{s_wgi}, 10")
    e(f"s_add_u32 s{s_t1}, s{s_t1}, {ABASE}")
    e(f"v_lshl_add_u32 v{vPf}, v{lane}, 7, s{s_t1}")
    e("s_mov_b64 exec, 0xff")
    if "npt" not in xp: e(f"global_load_dword v{vPf}, v{vPf}, {sr(sWS,2)} sc1")
    e("s_mov_b64 exec, -1")
    tagpair(vTa, vTb, sM[0])
    e(f"s_lshl_b32 s{s_t0}, s{s_h}, 13")
    e(f"s_add_u32 s{s_t0}, s{s_t0}, {QBASE+4096}")
    e(f"v_add_u32 v{vQp}, s{s_t0}, v{vl16}")
    e(f"v_lshrrev_b32 v{t1}, 1, v{kg}")
    e(f"v_lshlrev_b32 v{vQw}, 3, v{c2}")
    e(f"v_lshl_add_u32 v{vQw}, v{t1}, 8, v{vQw}")
    e(f"s_lshl_b32 s{s_t0}, s{s_cb}, 16")
    e(f"s_lshl_b32 s{s_t1}, s{s_c}, 10")
    e(f"s_add_u32 s{s_t0}, s{s_t0}, s{s_t1}")
    e(f"s_add_u32 s{s_t0}, s{s_t0}, {FIN}")
    e(f"v_add_u32 v{vSc}, s{s_t0}, v{vl16}")
    e(f"v_and_b32 v{t0}, 7, v{m}")
    e(f"v_lshrrev_b32 v{t2}, 2, v{bl}")
    e(f"v_lshl_add_u32 v{t2}, v{t0}, 9, v{t2}")
    e(f"s_lshl_b32 s{s_t0}, s{s_h}, 12")
    e(f"s_lshl_b32 s{s_t1}, s{s_j1}, 7")
    e(f"s_add_u32 s{s_t0}, s{s_t0}, s{s_t1}")
    e(f"s_add_u32 s{s_t0}, s{s_t0}, {HBASE}")
    e(f"v_add_u32 v{t2}, s{s_t0}, v{t2}")
    e(f"v_lshl_add_u32 v{vHpa}, v{kg}, 4, v{t2}")
    e(f"v_lshl_add_u32 v{vHpb}, v{kg}, 3, v{t2}")
    e(f"v_mov_b32 v{t3}, 0")
    e(f"v_mov_b32 v{t2}, 1")
    smem_gate("L_gq", QBASE, 13, 1024, 1020, 3)
    stamp()
    hp = xl; AF6 = W + 32
    def hloads(sc=" sc1"):
        if "nH" in xp:
            e(f"global_load_dword v{hp}, v{t3}, {sr(sX,2)}"); e(f"global_load_dword v{hp}, v{t3}, {sr(sX,2)}"); return
        e(f"global_load_dwordx4 {vr(hp,4)}, v{vHpa}, {sr(sWS,2)}{sc}")
        e(f"global_load_dwordx2 {vr(hp+4,2)}, v{vHpb}, {sr(sWS,2)} offset:64{sc}")
    g.lab("L_pq")
    for p in range(8):
        e(f"global_load_dwordx4 {vr(P+4*p,4)}, v{vQp}, {sr(sWS,2)} offset:{p*1024-4096} sc1")
    hloads("")
    for p in range(8):
        e(f"s_waitcnt vmcnt({9-p})")
        for r in range(4): e(f"v_xor_b32 v{P+4*p+r}, s{sT[r]}, v{P+4*p+r}")
        if p == 0: e(f"v_or_b32 v{t0}, v{P}, v{P+1}")
        else: e(f"v_or3_b32 v{t0}, v{t0}, v{P+4*p}, v{P+4*p+1}")
        e(f"v_or3_b32 v{t0}, v{t0}, v{P+4*p+2}, v{P+4*p+3}")
    poll_tail(t0, "L_pq")
    stamp()
    sum_n(P, 8)
    e(f"v_cvt_pk_bf16_f32 v{P}, v{P}, v{P+1}")
    e(f"v_cvt_pk_bf16_f32 v{P+1}, v{P+2}, v{P+3}")
    e(f"ds_write_b64 v{vQw}, {vr(P,2)} offset:{L_Q}")
    e("s_waitcnt lgkmcnt(0)")
    e("s_mov_b64 exec, 1")
    e(f"ds_write_b32 v{t3}, v{t2} offset:{L_FL}")
    e("s_mov_b64 exec, -1")
    id_issue()
    e(f"s_mov_b32 s{s_cnt}, {spin}")
    e("s_branch L_ph_c")
    g.lab("L_ph")
    hloads()
    g.lab("L_ph_c")
    e("s_waitcnt vmcnt(0)")
    for r in range(4): e(f"v_xor_b32 v{hp+r}, s{sT[r]}, v{hp+r}")
    e(f"v_xor_b32 v{hp+4}, v{vTa}, v{hp+4}")
    e(f"v_xor_b32 v{hp+5}, v{vTb}, v{hp+5}")
    e(f"v_or_b32 v{t0}, v{hp+4}, v{hp+5}")
    for i in range(0, 4, 2): e(f"v_or3_b32 v{t0}, v{t0}, v{hp+i}, v{hp+i+1}")
    if "nH" in xp: e(f"v_mov_b32 v{t0}, 0")
    poll_tail(t0, "L_ph")
    red8("v_add_f32", [hp+i for i in range(6)])
    for i in range(0, 6, 2): rbf2(hp+i, hp+i+1, t0)
    bsrc = [b1a, b1a+1, b1b]
    for i in range(3):
        e(f"v_lshlrev_b32 v{t0}, 16, v{bsrc[i]}")
        e(f"v_and_b32 v{t1}, s{s_hi}, v{bsrc[i]}")
        e(f"v_add_f32 v{hp+2*i}, v{hp+2*i}, v{t0}")
        e(f"v_add_f32 v{hp+2*i+1}, v{hp+2*i+1}, v{t1}")
    for i in range(0, 6, 2): rbf2(hp+i, hp+i+1, t0)
    for i in range(6): e(f"v_max_f32 v{hp+i}, 0, v{hp+i}")
    for i in range(6): e(f"v_mul_f32 v{hp+i}, v{hp+i}, v{hp+i}")
    for i in range(6): afrag(AF6+4*i, hp+i)
    e("s_nop 1")
    for i in range(6): mfma(D, AF6+4*i, w2+4*i, None if i == 0 else D)
    vMr, vOr, vMs, vZ = vX, vXr, vW, vPf
    fw = xd; MLv = xl
    e("s_nop 2")
    e(f"v_lshrrev_b32 v{vZ}, 5, v{lane}")
    e(f"v_lshlrev_b32 v{vMr}, 6, v{vZ}")
    e(f"v_and_b32 v{t0}, 31, v{lane}")
    e(f"v_lshlrev_b32 v{vOr}, 4, v{t0}")
    e(f"v_lshl_add_u32 v{vOr}, v{vZ}, 11, v{vOr}")
    tag4(D)
    if "nF" not in xp: e(f"global_store_dwordx4 v{vSc}, {vr(D,4)}, {sr(sWS,2)} sc1")
    stamp()
    e(f"s_lshl_b32 s{s_t0}, s{s_wgi}, 4")
    e(f"s_add_u32 s{s_t0}, s{s_t0}, {MLBASE}")
    e(f"v_lshl_add_u32 v{vMs}, v{vZ}, 3, s{s_t0}")
    e(f"s_lshl_b32 s{s_t0}, s{s_h}, 13")
    e(f"s_lshl_b32 s{s_t1}, s{s_j}, 4")
    e(f"s_add_u32 s{s_t0}, s{s_t0}, s{s_t1}")
    e(f"s_add_u32 s{s_t0}, s{s_t0}, {ABASE}")
    e(f"v_lshl_add_u32 v{vPub}, v{t0}, 8, s{s_t0}")
    e(f"v_lshl_add_u32 v{vPub}, v{vZ}, 7, v{vPub}")
    e("s_waitcnt lgkmcnt(0)")
    id_check()
    e(f"v_cmp_eq_u32 {sr(sM[0],2)}, 1, v{vZ}")
    tagpair(vTa, vTb, sM[0])
    e(f"v_mov_b32 v{vZ}, 0")
    e(f"v_lshlrev_b32 v{b2v}, 16, v{b2v}")
    e(f"v_lshlrev_b32 v{xo}, 16, v{xo}")
    e(f"s_mov_b32 s{s_cnt}, {spin*16}")
    g.lab("L_wm")
    for i in range(4): e(f"ds_read_b128 {vr(P+4*i,4)}, v{vMr} offset:{L_ML+16*i}")
    e("s_waitcnt lgkmcnt(0)")
    e(f"v_and_b32 v{t0}, v{P+2}, v{P+6}")
    e(f"v_and_b32 v{t1}, v{P+10}, v{P+14}")
    e(f"v_and_b32 v{t0}, v{t0}, v{t1}")
    e(f"v_cmp_ne_u32 vcc, 1, v{t0}")
    e("s_cbranch_vccz L_wm_ok")
    e("s_sleep 1")
    e(f"s_sub_u32 s{s_cnt}, s{s_cnt}, 1")
    e(f"s_cmp_lg_u32 s{s_cnt}, 0")
    e("s_cbranch_scc1 L_wm")
    g.lab("L_wm_ok")
    e(f"v_max3_f32 v{MLv}, v{P}, v{P+4}, v{P+8}")
    e(f"v_max_f32 v{MLv}, v{MLv}, v{P+12}")
    for i in range(4): e(f"v_sub_f32 v{fw+i}, v{P+4*i}, v{MLv}")
    for i in range(4): e(f"v_mul_f32 v{fw+i}, s{s_l2e}, v{fw+i}")
    for i in range(4): e(f"v_exp_f32 v{fw+i}, v{fw+i}")
    e(f"v_mul_f32 v{MLv+1}, v{fw}, v{P+1}")
    for i in range(1, 4): e(f"v_fmac_f32 v{MLv+1}, v{fw+i}, v{P+4*i+1}")
    e(f"v_and_or_b32 v{MLv}, v{MLv}, v{vFF}, v{vTa}")
    e(f"v_and_or_b32 v{MLv+1}, v{MLv+1}, v{vFF}, v{vTb}")
    e("s_mov_b32 exec_lo, 1"); e("s_mov_b32 exec_hi, 1")
    publish(vMs, MLv, n4=2)
    e("s_mov_b64 exec, -1")
    e(f"s_mov_b32 s{s_cnt}, {spin}")
    e("s_barrier")
    for i in range(4): e(f"ds_read_b128 {vr(P+4*i,4)}, v{vOr} offset:{L_OP+512*i}")
    e("s_waitcnt lgkmcnt(3)")
    for r in range(4): e(f"v_mul_f32 v{P+r}, v{P+r}, v{fw}")
    for i in range(1, 4):
        e(f"s_waitcnt lgkmcnt({3-i})")
        for r in range(4): e(f"v_fmac_f32 v{P+r}, v{P+4*i+r}, v{fw+i}")
    tag4(P)
    publish(vPub, P)
    stamp()
    e(f"s_cmp_ge_u32 s{s_j}, 2")
    e("s_cbranch_scc1 L_noep")
    Q = P + 16; QB = P + 32
    def inl(Q):
        for i in range(4): e(f"global_load_dwordx4 {vr(Q+4*i,4)}, v{vI+i}, {sr(sWS,2)} sc1")
    inl(Q)
    e("s_barrier")
    def chk(Q):
        for i in range(4):
            e(f"s_waitcnt vmcnt({3-i})")
            for r in range(4): e(f"v_xor_b32 v{Q+4*i+r}, s{sT[r]}, v{Q+4*i+r}")
            if i == 0: e(f"v_or_b32 v{t0}, v{Q}, v{Q+1}")
            else: e(f"v_or3_b32 v{t0}, v{t0}, v{Q+4*i}, v{Q+4*i+1}")
            e(f"v_or3_b32 v{t0}, v{t0}, v{Q+4*i+2}, v{Q+4*i+3}")
            if i:
                for r in range(4): e(f"v_add_f32 v{Q+r}, v{Q+r}, v{Q+4*i+r}")
    def red64(Q):
        e(f"v_permlane32_swap_b32 v{Q}, v{Q+1}")
        e(f"v_permlane32_swap_b32 v{Q+2}, v{Q+3}")
        e(f"v_add_f32 v{Q}, v{Q}, v{Q+1}")
        e(f"v_add_f32 v{Q+2}, v{Q+2}, v{Q+3}")
        e("s_nop 1")
        e(f"v_permlane16_swap_b32 v{Q}, v{Q+2}")
        e(f"v_add_f32 v{Q}, v{Q}, v{Q+2}")
        for ctl in ("row_ror:8", "row_ror:4"):
            e("s_nop 1"); dpp("v_add_f32", Q, Q, Q, ctl)
        rbf(Q, Q)
    e("s_branch L_pf_c")
    g.lab("L_pf")
    inl(Q)
    g.lab("L_pf_c")
    chk(Q)
    poll_tail(t0, "L_pf")
    stamp()
    for i in range(4): e(f"v_add_u32 v{vI+i}, {BIN-FIN}, v{vI+i}")
    inl(QB)
    red64(Q)
    e(f"v_add_f32 v{Q}, v{Q}, v{b2v}")
    rbf(Q, Q)
    e(f"v_mul_f32 v{t0}, s{s_l2e}, v{Q}")
    e(f"v_exp_f32 v{t0}, -v{t0}")
    e("s_nop 0")
    e(f"v_add_f32 v{t0}, 1.0, v{t0}")
    e(f"v_rcp_f32 v{t0}, v{t0}")
    e("s_nop 0")
    e(f"v_mul_f32 v{gv}, v{Q}, v{t0}")
    rbf(gv, gv)
    e(f"s_mov_b32 s{s_cnt}, {spin}")
    if bp == 1:
        e("s_branch L_pb_c")
        g.lab("L_pb")
        inl(QB)
        g.lab("L_pb_c")
        chk(QB)
        poll_tail(t0, "L_pb")
    else:
        sets = [QB, P + 48, P][:bp]
        ACC = D
        for k in range(1, bp - 1): inl(sets[k])
        g.lab("L_pb")
        for k in range(bp):
            inl(sets[(k + bp - 1) % bp])
            Z = sets[k]; base = 4 * (bp - 1)
            for i in range(4):
                e(f"s_waitcnt vmcnt({base+3-i})")
                for r in range(4): e(f"v_xor_b32 v{Z+4*i+r}, s{sT[r]}, v{Z+4*i+r}")
                if i == 0: e(f"v_or_b32 v{t0}, v{Z}, v{Z+1}")
                else: e(f"v_or3_b32 v{t0}, v{t0}, v{Z+4*i}, v{Z+4*i+1}")
                e(f"v_or3_b32 v{t0}, v{t0}, v{Z+4*i+2}, v{Z+4*i+3}")
                if i:
                    for r in range(4): e(f"v_add_f32 v{ACC+r}, v{(Z if i == 1 else ACC)+r}, v{Z+4*i+r}")
            e(f"v_and_b32 v{t0}, 0xff, v{t0}")
            e(f"v_cmp_ne_u32 vcc, 0, v{t0}")
            e("s_cbranch_vccz L_pb_ok")
        e(f"s_sub_u32 s{s_cnt}, s{s_cnt}, 1")
        e(f"s_cmp_lg_u32 s{s_cnt}, 0")
        e("s_cbranch_scc1 L_pb")
        g.lab("L_pb_ok")
        QB = ACC
    stamp()
    red64(QB)
    e(f"v_mul_f32 v{QB}, v{QB}, v{gv}")
    rbf(QB, QB)
    e(f"v_add_f32 v{QB}, v{QB}, v{xo}")
    e(f"v_cvt_pk_bf16_f32 v{QB}, v{QB}, v{QB}")
    e("s_mov_b32 exec_lo, 0x000f000f"); e("s_mov_b32 exec_hi, 0x000f000f")
    e(f"global_store_short v{vFo}, v{QB}, {sr(sOUT,2)}")
    e("s_cmp_lg_u32 s2, 0")
    e("s_cbranch_scc1 L_noep")
    e(f"s_add_u32 s{s_t0}, s{s_E}, 1")
    e(f"v_mov_b32 v{t0}, s{s_t0}")
    e("s_mov_b64 exec, 1")
    e(f"global_store_dword v{vZ}, v{t0}, {sr(sWS,2)}")
    g.lab("L_noep")
    stamp()
    dump_stamps(w2)
    e("s_endpgm")
    g.lab("L_f2")
    nst[0] = nst_split
    e("s_mov_b32 exec_lo, 0x00ff00ff"); e("s_mov_b32 exec_hi, 0x00ff00ff")
    publish(vPub, D, True)
    stamp()
    dump_stamps(W+32)
    e("s_endpgm")

    g.lab("L_stream")
    nst[0] = 1 if diag else 0
    g.reset(common_end)
    vKa = g.v(4); vKr = g.v(4)
    vV, vWo, vQr, vOw, vAp, vMp, vMw, vL, vSr, vSc, vTa, vTb, vTc, vTd, vZ, fv = [g.v() for _ in range(16)]
    mw = g.v(4); lw = mw + 1
    ml = g.v(2); op = g.v(4)
    s_par = 68
    qf = g.v(16); Kf = g.v(32); Vf = g.v(32); wo = g.v(8)
    D0 = g.v(4); D1 = g.v(4)
    A0 = qf; A1 = qf + 4
    s_sw, s_bw, s_kv = 13, 14, 15
    e(f"s_sub_u32 s{s_sw}, s{s_wv}, 2")
    e(f"s_lshr_b32 s{s_bw}, s{s_sw}, 2")
    e(f"s_and_b32 s{s_t0}, s{s_sw}, 3")
    e(f"s_lshl_b32 s{s_t0}, s{s_t0}, 13")
    e(f"s_lshl_b32 s{s_kv}, s{s_bw}, 25")
    e(f"s_lshl_b32 s{s_t1}, s{s_h}, 20")
    e(f"s_add_u32 s{s_kv}, s{s_kv}, s{s_t1}")
    e(f"s_add_u32 s{s_kv}, s{s_kv}, s{s_t0}")
    e(f"s_lshl_b32 s{s_t1}, s{s_j}, 15")
    e(f"s_add_u32 s{s_kv}, s{s_kv}, s{s_t1}")
    e(f"s_add_u32 s{s_kv}, s{s_kv}, {3072*256}")
    s_c2, s_cK, s_cV, s_m0b, s_so = 42, 43, 60, 61, 62
    if perm:
        e(f"s_lshl_b32 s{s_t0}, s2, 3")
        e(f"s_add_u32 s{s_t0}, s{s_t0}, s{s_sw}")
        e(f"s_mul_i32 s{s_t0}, s{s_t0}, 0x9e3779b1")
        e(f"s_lshr_b32 s{s_t0}, s{s_t0}, 29")
    else:
        e(f"s_mov_b32 s{s_t0}, 0")
    e(f"s_and_b32 s{s_c2}, s{s_t0}, 3")
    e(f"s_lshl_b32 s{s_cK}, s{s_t0}, 10")
    e(f"s_and_b32 s{s_cV}, s{s_cK}, 0x1000")
    e(f"s_lshl_b32 s{s_t1}, s{s_c2}, 8")
    e(f"s_or_b32 s{s_cV}, s{s_cV}, s{s_t1}")
    e(f"s_lshl_b32 s{s_t1}, s{s_c2}, 2")
    e(f"v_xor_b32 v{t0}, v{m}, v{kg}")
    e(f"v_xor_b32 v{t0}, s{s_t1}, v{t0}")
    e(f"v_lshl_add_u32 v{t1}, v{kg}, 8, s{s_kv}")
    for i in range(4):
        if i: e(f"v_xor_b32 v{t2}, {4*i}, v{t0}")
        e(f"v_lshl_add_u32 v{vKa+i}, v{t2 if i else t0}, 4, v{t1}")
    e(f"s_lshl_b32 s{s_m0b}, s{s_sw}, 13")
    e(f"s_add_u32 s{s_m0b}, s{s_m0b}, {L_K}")
    e(f"s_and_b32 s{s_t1}, s{s_cK}, 0xc00")
    e(f"s_or_b32 s{s_m0b}, s{s_m0b}, s{s_t1}")
    e(f"v_lshl_add_u32 v{vV}, v{kg}, {8 if 'vlin' in xp else 10}, s{s_kv}")
    if 'vlin' in xp: e(f"s_mov_b32 s{s_cV}, s{s_cK}")
    e(f"v_add_u32 v{vV}, v{vV}, v{m16}")
    e(f"s_mov_b32 s{srdA+2}, {1<<26}"); e(f"s_mov_b32 s{srdA+3}, 0x20000")
    e(f"s_mov_b32 s{srdB+2}, {1<<26}"); e(f"s_mov_b32 s{srdB+3}, 0x20000")
    e("s_waitcnt lgkmcnt(0)")
    e(f"s_mov_b32 s{srdA}, s{sK}"); e(f"s_mov_b32 s{srdA+1}, s{sK+1}")
    e(f"s_mov_b32 s{srdB}, s{sV}"); e(f"s_mov_b32 s{srdB+1}, s{sV+1}")
    e(f"s_load_dword s{s_E}, {sr(sWS,2)}, 0")
    if not early:
        e("s_barrier")
        stamp()
    def prep():
        masks_and_tags()
        e(f"s_lshl_b32 s{s_t0}, s{s_h}, 7")
        e(f"s_lshl_b32 s{s_t1}, s{s_j1}, 6")
        e(f"s_add_u32 s{s_t0}, s{s_t0}, s{s_t1}")
        e(f"s_lshr_b32 s{s_t1}, s{s_sw}, 1")
        e(f"s_lshl_b32 s{s_t1}, s{s_t1}, 4")
        e(f"s_add_u32 s{s_t0}, s{s_t0}, s{s_t1}")
        e(f"s_and_b32 s{s_t1}, s{s_sw}, 1")
        e(f"s_lshl_b32 s{s_t1}, s{s_t1}, 1")
        e(f"s_add_u32 s{s_t0}, s{s_t0}, s{s_t1}")
        e(f"s_lshl_b32 s{s_t0}, s{s_t0}, 10")
        e(f"s_lshl_b32 s{s_t1}, s{s_cb}, 8")
        e(f"s_add_u32 s{s_t0}, s{s_t0}, s{s_t1}")
        e(f"v_lshl_add_u32 v{vWo}, v{kg}, 12, v{m16}")
        e(f"v_add_u32 v{vWo}, s{s_t0}, v{vWo}")
        e(f"s_lshl_b32 s{s_t0}, s{s_bw}, 8")
        e(f"v_lshl_add_u32 v{vQr}, v{kg}, 4, s{s_t0}")
        e(f"v_mov_b32 v{vZ}, 0")
        e(f"s_lshl_b32 s{s_t0}, s{s_sw}, 13")
        e(f"s_add_u32 s{s_t0}, s{s_t0}, {L_K}")
        e(f"v_xor_b32 v{t0}, s{s_c2}, v{m}")
        e(f"v_lshl_add_u32 v{t1}, v{t0}, 8, s{s_t0}")
        e(f"v_xor_b32 v{t0}, v{t0}, v{kg}")
        for s in range(4):
            if s: e(f"v_xor_b32 v{t2}, {4*s}, v{t0}")
            e(f"v_lshl_add_u32 v{vKr+s}, v{t2 if s else t0}, 4, v{t1}")
        e(f"s_lshl_b32 s{s_t0}, s{s_sw}, 9")
        e(f"v_lshl_add_u32 v{vOw}, v{m}, 5, s{s_t0}")
        e(f"v_lshl_add_u32 v{vOw}, v{kg}, 4, v{vOw}")
        e(f"s_lshl_b32 s{s_t0}, s{s_sw}, 4")
        e(f"v_mov_b32 v{vMw}, s{s_t0}")
        e(f"v_and_b32 v{t0}, 7, v0")
        e(f"s_lshl_b32 s{s_t0}, s{s_h}, 13")
        e(f"s_lshl_b32 s{s_t1}, s{s_j1}, 12")
        e(f"s_add_u32 s{s_t0}, s{s_t0}, s{s_t1}")
        e(f"s_lshr_b32 s{s_t1}, s{s_sw}, 1")
        e(f"s_lshl_b32 s{s_t1}, s{s_t1}, 10")
        e(f"s_add_u32 s{s_t0}, s{s_t0}, s{s_t1}")
        e(f"s_add_u32 s{s_t0}, s{s_t0}, {ABASE}")
        e(f"v_lshl_add_u32 v{vAp}, v{lane}, 4, s{s_t0}")
        e(f"v_lshrrev_b32 v{t1}, 7, v{bl}")
        e(f"v_lshl_add_u32 v{vMp}, v{t0}, 4, v{t1}")
        e(f"s_lshl_b32 s{s_t0}, s{s_h}, 7")
        e(f"s_add_u32 s{s_t0}, s{s_t0}, {MLBASE}")
        e(f"v_add_u32 v{vMp}, s{s_t0}, v{vMp}")
        e(f"s_mul_i32 s{s_t0}, s{s_sw}, {SPS}")
        e(f"v_lshl_add_u32 v{vL}, v{lane}, 4, s{s_t0}")
        e(f"v_lshl_add_u32 v{t1}, v{kg}, 3, v{t0}")
        e(f"s_lshl_b32 s{s_t0}, s{s_sw}, 9")
        e(f"v_lshl_add_u32 v{t1}, v{t1}, 4, s{s_t0}")
        e(f"v_lshl_add_u32 v{vSr}, v{bl}, 2, v{t1}")
        e(f"s_lshl_b32 s{s_t0}, s{s_cb}, 16")
        e(f"s_lshl_b32 s{s_t1}, s{s_h}, 11")
        e(f"s_add_u32 s{s_t0}, s{s_t0}, s{s_t1}")
        e(f"s_lshl_b32 s{s_t1}, s{s_j1}, 10")
        e(f"s_add_u32 s{s_t0}, s{s_t0}, s{s_t1}")
        e(f"s_add_u32 s{s_t0}, s{s_t0}, {BIN}")
        e(f"v_add_u32 v{vSc}, s{s_t0}, v{t1}")
        e(f"v_cmp_ne_u32 {sr(sM[1],2)}, 0, v{bl}")
        e(f"s_bitcmp1_b32 s{s_sw}, 0")
        e(f"s_cselect_b64 {sr(s_par,2)}, -1, 0")
        tagpair(vTc, vTd, sM[1])
        e(f"v_mov_b32 v{mw+2}, 1"); e(f"v_mov_b32 v{mw+3}, 1")
    kread_done = False
    dn = sched or [vd]*16
    first_wait = min(n for n in range(16) if n >= dn[n])
    for n in range(16):
        vd = dn[n]
        if early and n == early:
            e("s_barrier")
            stamp()
        if n == first_wait: prep()
        if n < 8:
            e(f"s_xor_b32 m0, s{s_m0b}, {n*1024}")
            e(f"s_xor_b32 s{s_so}, s{s_cK}, {n*1024}")
            if n >= vd: e(f"s_waitcnt vmcnt({vd-1})")
            e(f"buffer_load_dwordx4 v{vKa+n%4}, {sr(srdA,4)}, s{s_so} offen{fK} lds")
        else:
            i = n - 8
            e(f"s_xor_b32 s{s_so}, s{s_cV}, {(i//4)*4096+(i%4)*(1024 if 'vlin' in xp else 256)}")
            if n >= vd: e(f"s_waitcnt vmcnt({vd-1})")
            e(f"buffer_load_dwordx4 {vr(Vf+i*4,4)}, v{vV}, {sr(srdB,4)}, s{s_so} offen{fV}")
            if n == 8: stamp()
            if burst and n < 15:
                e(f"ds_read_b32 v{fv}, v{vZ} offset:{L_FL}")
                e("s_waitcnt lgkmcnt(0)")
                e(f"v_cmp_ne_u32 vcc, 1, v{fv}")
                e(f"s_cbranch_vccz L_u{n+1}")
        if n - (vd - 1) >= 8 and not kread_done and not burst:
            kread_done = True
            for u in range(2):
                for s in range(4): e(f"ds_read_b128 {vr(Kf+(u*4+s)*4,4)}, v{vKr+s} offset:{u*4096}")
    if burst:
        e("s_branch L_u16")
        for n in range(9, 16):
            i = n - 8
            g.lab(f"L_u{n}")
            e(f"s_xor_b32 s{s_so}, s{s_cV}, {(i//4)*4096+(i%4)*256}")
            e(f"buffer_load_dwordx4 {vr(Vf+i*4,4)}, v{vV}, {sr(srdB,4)}, s{s_so} offen{fV}")
        g.lab("L_u16")
    if not kread_done:
        post_kread = True
    else:
        post_kread = False
    def woload():
        e(f"global_load_dwordx4 {vr(wo,4)}, v{vWo}, {sr(sWO,2)}{fW}")
        e(f"global_load_dwordx4 {vr(wo+4,4)}, v{vWo}, {sr(sWO,2)} offset:1024{fW}")
    if wol == 0: woload()
    if post_kread:
        e(f"s_waitcnt vmcnt({10 if wol == 0 else 8})")
        for u in range(2):
            for s in range(4): e(f"ds_read_b128 {vr(Kf+(u*4+s)*4,4)}, v{vKr+s} offset:{u*4096}")
    stamp()
    e(f"s_mov_b32 s{s_cnt}, {spin*16}")
    g.lab("L_wq")
    e(f"ds_read_b32 v{fv}, v{vZ} offset:{L_FL}")
    for s in range(4): e(f"ds_read_b128 {vr(qf+4*s,4)}, v{vQr} offset:{L_Q+64*s}")
    e("s_waitcnt lgkmcnt(0)")
    e(f"v_cmp_ne_u32 vcc, 1, v{fv}")
    e("s_cbranch_vccz L_wq_ok")
    e("s_sleep 2")
    e(f"s_sub_u32 s{s_cnt}, s{s_cnt}, 1")
    e(f"s_cmp_lg_u32 s{s_cnt}, 0")
    e("s_cbranch_scc1 L_wq")
    g.lab("L_wq_ok")
    stamp()
    for s in range(4):
        mfma(D0, Kf+4*s, qf+4*s, None if s == 0 else D0)
        mfma(D1, Kf+16+4*s, qf+4*s, None if s == 0 else D1)
    e("s_nop 7")
    assert D1 == D0 + 4
    S = D0
    for i in range(0, 8, 2): rbf2(S+i, S+i+1, t0)
    for i in range(8): e(f"v_mul_f32 v{S+i}, s{s_scale}, v{S+i}")
    for i in range(0, 8, 2): rbf2(S+i, S+i+1, t0)
    e(f"v_max3_f32 v{mw}, v{S}, v{S+1}, v{S+2}")
    e(f"v_max3_f32 v{mw}, v{mw}, v{S+3}, v{S+4}")
    e(f"v_max3_f32 v{mw}, v{mw}, v{S+5}, v{S+6}")
    e(f"v_max_f32 v{mw}, v{mw}, v{S+7}")
    redgrp("v_max_f32", mw, t0)
    for i in range(8): e(f"v_sub_f32 v{S+i}, v{S+i}, v{mw}")
    for i in range(8): e(f"v_mul_f32 v{S+i}, s{s_l2e}, v{S+i}")
    for i in range(8): e(f"v_exp_f32 v{S+i}, v{S+i}")
    e(f"v_add_f32 v{lw}, v{S}, v{S+1}")
    for i in range(2, 8): e(f"v_add_f32 v{lw}, v{lw}, v{S+i}")
    redgrp("v_add_f32", lw, t0)
    e("s_mov_b64 exec, 1")
    e(f"ds_write_b128 v{vMw}, {vr(mw,4)} offset:{L_ML}")
    e("s_mov_b64 exec, -1")
    for i in range(8): afrag(Kf+4*i, S+i)
    e(f"s_mov_b32 s{s_cnt}, {spin}")
    stamp()
    nwo = 2 if wol == 0 else 0
    for i in range(8):
        if wol >= 10 and i == wol - 10:
            woload(); nwo = 2
        e(f"s_waitcnt vmcnt({7-i+nwo})")
        mfma(D0, Kf+4*i, Vf+4*i, None if i == 0 else D0)
    stamp()
    e(f"global_load_dwordx2 {vr(ml,2)}, v{vMp}, {sr(sWS,2)} sc1")
    if wol == 1:
        woload(); e("s_nop 3")
    else:
        e("s_nop 5")
    e("s_mov_b32 exec_hi, 0")
    e(f"ds_write_b128 v{vOw}, {vr(D0,4)} offset:{L_OP}")
    e("s_mov_b32 exec_hi, -1")
    e("s_waitcnt lgkmcnt(0)")
    e("s_barrier")
    if wol == 2: woload()
    e(f"s_waitcnt vmcnt({2 if wol in (1, 2) else 0})")
    e("s_branch L_pml_c")
    g.lab("L_pml")
    e(f"global_load_dwordx2 {vr(ml,2)}, v{vMp}, {sr(sWS,2)} sc1")
    e("s_waitcnt vmcnt(0)")
    g.lab("L_pml_c")
    e(f"v_xor_b32 v{ml}, v{ml}, v{vTc}")
    e(f"v_xor_b32 v{ml+1}, v{ml+1}, v{vTd}")
    e(f"v_or_b32 v{t0}, v{ml}, v{ml+1}")
    poll_tail(t0, "L_pml", slp)
    stamp()
    e(f"v_mov_b32 v{t0}, v{ml}")
    red8("v_max_f32", [t0])
    e(f"v_sub_f32 v{t0}, v{ml}, v{t0}")
    e(f"v_mul_f32 v{t0}, s{s_l2e}, v{t0}")
    e(f"v_exp_f32 v{t0}, v{t0}")
    e(f"global_load_dwordx4 {vr(op,4)}, v{vAp}, {sr(sWS,2)} sc1")
    e(f"v_mul_f32 v{t1}, v{t0}, v{ml+1}")
    red8("v_add_f32", [t1])
    e(f"v_rcp_f32 v{t1}, v{t1}")
    e(f"s_mov_b32 s{s_cnt}, {spin}")
    e(f"v_mul_f32 v{t3}, v{t0}, v{t1}")
    e("s_branch L_pa2")
    g.lab("L_pa")
    e(f"global_load_dwordx4 {vr(op,4)}, v{vAp}, {sr(sWS,2)} sc1")
    g.lab("L_pa2")
    e("s_waitcnt vmcnt(0)")
    for r in range(4): e(f"v_xor_b32 v{op+r}, s{sT[r]}, v{op+r}")
    e(f"v_or_b32 v{t0}, v{op}, v{op+1}")
    e(f"v_or3_b32 v{t0}, v{t0}, v{op+2}, v{op+3}")
    poll_tail(t0, "L_pa", slp)
    stamp()
    e(f"v_cndmask_b32 v{op}, v{op}, v{op+2}, {sr(s_par,2)}")
    e(f"v_cndmask_b32 v{op+1}, v{op+1}, v{op+3}, {sr(s_par,2)}")
    e(f"v_mul_f32 v{op}, v{op}, v{t3}")
    e(f"v_mul_f32 v{op+1}, v{op+1}, v{t3}")
    red8("v_add_f32", [op, op+1])
    afrag(A0, op); afrag(A1, op+1)
    e("s_nop 0")
    mfma(D0, A0, wo, None)
    mfma(D0, A1, wo+4, D0)
    e("s_nop 7")
    e(f"ds_write_b128 v{vL}, {vr(D0,4)} offset:{L_SP}")
    e("s_waitcnt lgkmcnt(0)")
    e("s_barrier")
    stamp()
    e(f"s_cmp_ge_u32 s{s_sw}, 2")
    e("s_cbranch_scc1 L_sdone")
    R = Vf
    for i in range(4): e(f"ds_read_b128 {vr(R+4*i,4)}, v{vSr} offset:{L_SP+1024*i}")
    e("s_waitcnt lgkmcnt(2)")
    for r in range(4): e(f"v_add_f32 v{R+r}, v{R+r}, v{R+4+r}")
    e("s_waitcnt lgkmcnt(0)")
    for r in range(4): e(f"v_add_f32 v{R+8+r}, v{R+8+r}, v{R+12+r}")
    for r in range(4): e(f"v_add_f32 v{R+r}, v{R+r}, v{R+8+r}")
    for r in range(4): dpp("v_add_f32", R+r, R+r, R+r, "row_ror:8")
    tag4(R)
    e("s_mov_b32 exec_lo, 0x00ff00ff"); e("s_mov_b32 exec_hi, 0x00ff00ff")
    e(f"global_store_dwordx4 v{vSc}, {vr(R,4)}, {sr(sWS,2)} sc1")
    g.lab("L_sdone")
    stamp()
    dump_stamps(Kf)
    g.lab("L_end")
    e("s_endpgm")

    if "nows" in xp or "noaux" in xp:
        i0 = g.L.index("L_stream:")
        keep = []
        for n, l in enumerate(g.L):
            drop = False
            if n < i0:
                isdump = "offset:" in l and "global_store_dwordx4" in l and "sc1" not in l
                if ("s[40:41]" in l and ("global_" in l) and not isdump): drop = True
                if "glc" in l: drop = True
                if "noaux" in xp and ("buffer_load" in l or "global_load" in l): drop = True
            if not drop: keep.append(l)
        g.L = keep
    nv = (g.maxv + 7) // 8 * 8
    ldsb = L_K + 65536 if kdma else L_K
    hdr = open(os.path.join(os.path.dirname(os.path.abspath(__file__)), "..", "cdna_kernels", NAME + ".s.ref")).read().split("\n")
    top = [l for l in hdr if l.startswith(";") and "@launch" not in l and "Override" not in l and "grid=ceil" not in l]
    out = top + [f"; @launch grid=(256,1,1) block=({NW*64},1,1) lds={ldsb}",
        '.amdgcn_target "amdgcn-amd-amdhsa--gfx950"', ".text", f".globl {NAME}_kernel", ".p2align 8",
        f".type {NAME}_kernel,@function", f"{NAME}_kernel:"] + g.L + [
        '.section .rodata,"a"', ".p2align 6", f".amdhsa_kernel {NAME}_kernel",
        f"  .amdhsa_next_free_vgpr {nv}", "  .amdhsa_next_free_sgpr 102", f"  .amdhsa_accum_offset {nv}",
        "  .amdhsa_group_segment_fixed_size 0", "  .amdhsa_kernarg_size 104", "  .amdhsa_user_sgpr_count 2",
        "  .amdhsa_user_sgpr_kernarg_segment_ptr 1", "  .amdhsa_system_sgpr_workgroup_id_x 1", ".end_amdhsa_kernel", ""]
    return "\n".join(out)

if __name__ == "__main__":
    import argparse
    ap = argparse.ArgumentParser()
    ap.add_argument("-o", default=None)
    ap.add_argument("--diag", action="store_true")
    ap.add_argument("--opt", default="")
    a = ap.parse_args()
    kw = eval("dict(" + a.opt + ")")
    txt = gen(diag=a.diag, **kw)
    path = a.o or os.path.join(os.path.dirname(os.path.abspath(__file__)), "..", "cdna_kernels", NAME + ".s")
    open(path, "w").write(txt)
    print("wrote", path, len(txt.split("\n")), "lines", [l for l in txt.split("\n") if "next_free_vgpr" in l])
```

```python
import sys, os
NAME = "recurrent_scan__sliding_block_cached__dense_activation_squared_relu__decode"

class G:
    def __init__(self):
        self.L = []; self.nv = 0; self.maxv = 0
    def e(self, s): self.L.append("    " + s)
    def lab(self, s): self.L.append(s + ":")
    def reset(self, n): self.nv = n
    def v(self, n=1, al=1):
        if n >= 4: al = max(al, 4) if n % 4 == 0 else max(al, 2)
        elif n >= 2: al = max(al, 2)
        self.nv = (self.nv + al - 1) // al * al
        r = self.nv; self.nv += n
        self.maxv = max(self.maxv, self.nv)
        return r

def vr(b, n): return f"v[{b}:{b+n-1}]"
def sr(b, n): return f"s[{b}:{b+n-1}]"

QBASE = 0x1000
HBASE = QBASE + 0x40000
ABASE = HBASE + 0x20000
MLBASE = ABASE + 0x40000
IDBASE = MLBASE + 0x1000
FIN = IDBASE + 0x1000
BIN = FIN + 0x40000
DIAG = 0x400000
L_Q = 0; L_FL = 512; L_ML = 640; L_OP = 1024; OPS = 544; L_SP = 5632; SPS = 1024; L_K = 16384
NW = 10

SCALE = 0x3DB504F3
LOG2E = 0x3FB8AA3B
EPS = 0x3727C5AC

def gen(diag=False, fK="nt", fV="nt", fW="nt", kdma=True, bar0=True, fast=True, prio=True, pf=True, gate=True, vd=4, slp=1, perm=True, fmap=True, sched=None, bp=1, xp='', early=0, wol=1, burst=True, tlb=False, mlop=True, top=2, rd=0, b4b=True, b6=True, al=1, gw=False, idg=True, flate=0, bsl=4, spin=20000):
    g = G(); e = g.e
    fl = lambda f: (" " + f) if f else ""
    fK, fV, fW = fl(fK), fl(fV), fl(fW)
    sX, sK, sV, sWQ, sWO, sW1, sB1, sW2, sB2, sOUT, sWS = 16, 18, 20, 22, 24, 28, 30, 32, 34, 36, 40
    s_wv, s_h, s_j, s_t0, s_t1, s_E, s_cnt = 3, 4, 5, 6, 7, 8, 9
    s_j1, s_cb, s_wgi = 10, 11, 12
    s_g = 43
    sT = [44, 45, 46, 47]
    s_hi, s_scale, s_l2e, s_fast = 48, 49, 50, 51
    srdA, srdB, srdC = 52, 56, 60
    sM = [64, 66, 68, 70]
    sID = 64
    s_T, s_idw, s_ido = 26, 38, 27
    sG = 100
    ST0 = 72
    nst = [0]
    def stamp():
        if diag:
            e(f"s_memrealtime {sr(ST0+2*nst[0],2)}")
            nst[0] += 1
            assert nst[0] <= 14
    def dump_stamps(vt):
        if not diag: return
        e("s_mov_b64 exec, -1")
        e("s_waitcnt vmcnt(0) lgkmcnt(0)")
        e(f"s_getreg_b32 s{s_t0}, hwreg(HW_REG_XCC_ID)")
        e(f"s_getreg_b32 s{s_t1}, hwreg(HW_REG_HW_ID)")
        for i in range(14):
            src = f"s{ST0+2*i}" if i < nst[0] else "0"
            e(f"v_mov_b32 v{vt+i}, {src}")
        e(f"v_mov_b32 v{vt+14}, s{s_t0}")
        e(f"v_mov_b32 v{vt+15}, s{s_t1}")
        e(f"s_mul_i32 s{s_t0}, s2, {NW}")
        e(f"s_add_u32 s{s_t0}, s{s_t0}, s{s_wv}")
        e(f"s_lshl_b32 s{s_t0}, s{s_t0}, 6")
        e(f"s_add_u32 s{s_t0}, s{s_t0}, {DIAG}")
        e(f"v_mov_b32 v{vt+16}, s{s_t0}")
        e("s_mov_b64 exec, 1")
        for i in range(4):
            e(f"global_store_dwordx4 v{vt+16}, {vr(vt+4*i,4)}, {sr(sWS,2)} offset:{16*i}")
    def dpp(op, d, a, b, ctl):
        e(f"{op}_dpp v{d}, v{a}, v{b} {ctl} row_mask:0xf bank_mask:0xf")
    X1, X2, HM, RM = "quad_perm:[1,0,3,2]", "quad_perm:[2,3,0,1]", "row_half_mirror", "row_mirror"
    def red8(op, regs):
        for ctl in (X1, X2, HM):
            pad = max(0, 2 - (len(regs) - 1))
            if pad: e(f"s_nop {pad-1}")
            for r in regs: dpp(op, r, r, r, ctl)
    def redgrp(op, r, tmp):
        e(f"v_mov_b32 v{tmp}, v{r}"); e("s_nop 1")
        e(f"v_permlane16_swap_b32 v{r}, v{tmp}")
        e(f"{op} v{r}, v{r}, v{tmp}")
        e(f"v_mov_b32 v{tmp}, v{r}"); e("s_nop 1")
        e(f"v_permlane32_swap_b32 v{r}, v{tmp}")
        e(f"{op} v{r}, v{r}, v{tmp}")
    def rbf(d, a):
        e(f"v_cvt_pk_bf16_f32 v{d}, v{a}, v{a}")
        e(f"v_and_b32 v{d}, s{s_hi}, v{d}")
    def rbf2(a, b, tmp):
        e(f"v_cvt_pk_bf16_f32 v{tmp}, v{a}, v{b}")
        e(f"v_lshlrev_b32 v{a}, 16, v{tmp}")
        e(f"v_and_b32 v{b}, s{s_hi}, v{tmp}")
    def mfma(d, a, b, c):
        cc = "0" if c is None else vr(c, 4)
        e(f"v_mfma_f32_16x16x32_bf16 {vr(d,4)}, {vr(a,4)}, {vr(b,4)}, {cc}")
    def srd(d, p, n):
        e(f"s_mov_b32 s{d}, s{p}"); e(f"s_mov_b32 s{d+1}, s{p+1}")
        e(f"s_mov_b32 s{d+2}, {n}"); e(f"s_mov_b32 s{d+3}, 0x20000")

    g.reset(1)
    lane, m, kg = g.v(), g.v(), g.v()
    msk = g.v(4)
    vFF = g.v()
    t0, t1, t2, t3 = g.v(), g.v(), g.v(), g.v()
    bl, m16 = g.v(), g.v()
    common_end = g.nv
    e("s_cmp_ge_u32 s2, 256")
    e("s_cbranch_scc1 L_end")
    e(f"s_load_dwordx16 {sr(16,16)}, s[0:1], 0")
    e(f"s_load_dwordx8 {sr(32,8)}, s[0:1], 64")
    e(f"s_load_dwordx2 {sr(sWS,2)}, s[0:1], 96")
    stamp()
    if diag:
        for i in range(1, 14): e(f"s_mov_b32 s{ST0+2*i}, 0")
    e(f"v_lshrrev_b32 v{t0}, 6, v0")
    e(f"v_and_b32 v{lane}, 63, v0")
    e(f"v_readfirstlane_b32 s{s_wv}, v{t0}")
    e(f"v_and_b32 v{m}, 15, v0")
    e(f"v_bfe_u32 v{kg}, v0, 4, 2")
    e(f"s_lshr_b32 s{s_h}, s2, 6")
    e(f"s_lshl_b32 s{s_h}, s{s_h}, 3")
    e(f"s_and_b32 s{s_t0}, s2, 7")
    e(f"s_add_u32 s{s_h}, s{s_h}, s{s_t0}")
    e(f"s_bfe_u32 s{s_j}, s2, 0x30003")
    e(f"s_and_b32 s{s_j1}, s{s_j}, 1")
    e(f"s_lshr_b32 s{s_cb}, s{s_j}, 1")
    e(f"s_lshl_b32 s{s_wgi}, s{s_h}, 3")
    e(f"s_add_u32 s{s_wgi}, s{s_wgi}, s{s_j}")
    if fmap:
        e(f"s_lshl_b32 s{s_g}, s{s_t0}, 2")
        e(f"s_lshr_b32 s{s_t0}, s2, 6")
        e(f"s_add_u32 s{s_g}, s{s_g}, s{s_t0}")
    else:
        e(f"s_mov_b32 s{s_g}, s{s_h}")
    if "noffn" in xp: e(f"s_mov_b32 s{s_g}, 31")
    e(f"s_mov_b32 s{s_hi}, 0xffff0000")
    e(f"s_mov_b32 s{s_scale}, {SCALE:#x}")
    e(f"s_mov_b32 s{s_l2e}, {LOG2E:#x}")
    e(f"v_bfe_u32 v{bl}, v0, 3, 1")
    e(f"v_lshlrev_b32 v{bl}, 10, v{bl}")
    e(f"v_lshlrev_b32 v{m16}, 4, v{m}")
    e(f"s_cmp_ge_u32 s{s_wv}, 2")
    e("s_cbranch_scc1 L_stream")

    def masks_and_tags(tags=True):
        e(f"v_bfe_u32 v{t0}, v{m}, 1, 2")
        e(f"v_and_b32 v{t1}, 1, v{m}")
        e(f"v_lshlrev_b32 v{t1}, 4, v{t1}")
        e(f"v_mov_b32 v{t2}, 0xffff")
        e(f"v_lshlrev_b32 v{t1}, v{t1}, v{t2}")
        for i in range(4): e(f"v_cmp_eq_u32 {sr(sM[i],2)}, {i}, v{t0}")
        e(f"v_mov_b32 v{vFF}, 0xffffff00")
        for i in range(4): e(f"v_cndmask_b32 v{msk+i}, 0, v{t1}, {sr(sM[i],2)}")
        if tags: do_tags()
    def do_tags():
        e("s_waitcnt lgkmcnt(0)")
        e(f"s_mul_i32 s{s_t0}, s{s_E}, 0x9e3779b1")
        e(f"s_add_u32 s{s_t0}, s{s_t0}, 0x7f4a7c15")
        e(f"s_add_u32 s{sT[0]}, s{s_E}, 1")
        e(f"s_and_b32 s{sT[0]}, s{sT[0]}, 0xff")
        e(f"s_bfe_u32 s{sT[1]}, s{s_t0}, 0x80008")
        e(f"s_bfe_u32 s{sT[2]}, s{s_t0}, 0x80010")
        e(f"s_bfe_u32 s{sT[3]}, s{s_t0}, 0x80018")
        e(f"s_and_b32 s{s_T}, s{s_t0}, 0xffffff00")
        e(f"s_or_b32 s{s_T}, s{s_T}, s{sT[0]}")
        e(f"s_getreg_b32 s{s_t1}, hwreg(HW_REG_XCC_ID, 0, 4)")
        e(f"s_and_b32 s{s_idw}, s{s_T}, -16")
        e(f"s_or_b32 s{s_idw}, s{s_idw}, s{s_t1}")
        e(f"s_mov_b32 s{s_idw+1}, s{s_idw}")
        e(f"s_lshl_b32 s{s_ido}, s{s_h}, 7")
        e(f"s_add_u32 s{s_ido}, s{s_ido}, {IDBASE}")
    def id_issue():
        e(f"s_load_dwordx8 {sr(sID,8)}, {sr(sWS,2)}, s{s_ido} glc")
    def id_check():
        for i in range(4): e(f"s_xor_b64 {sr(sID+2*i,2)}, {sr(sID+2*i,2)}, {sr(s_idw,2)}")
        e(f"s_or_b64 {sr(sID,2)}, {sr(sID,2)}, {sr(sID+2,2)}")
        e(f"s_or_b64 {sr(sID+4,2)}, {sr(sID+4,2)}, {sr(sID+6,2)}")
        e(f"s_or_b64 {sr(sID,2)}, {sr(sID,2)}, {sr(sID+4,2)}")
        e(f"s_cselect_b32 s{s_fast}, 0, 1")
    def id_gate(lab, vaddr, d, mask):
        e(f"s_movk_i32 s{s_t1}, 400")
        g.lab(lab)
        id_issue()
        e(f"s_sub_u32 s{s_t1}, s{s_t1}, 1")
        e("s_waitcnt lgkmcnt(0)")
        e(f"s_cbranch_scc1 {lab}_s")
        id_check()
        e(f"s_or_b32 s{sID}, s{sID}, s{sID+1}")
        e(f"s_lshr_b32 s{sID}, s{sID}, 4")
        e(f"s_cbranch_scc1 {lab}")
        e(f"s_cmp_eq_u32 s{s_fast}, 1")
        e(f"s_cbranch_scc1 {lab}_f")
        g.lab(f"{lab}_s")
        e(f"s_mov_b32 s{s_fast}, 0")
        if mask: e(f"s_mov_b32 exec_lo, {mask}"); e(f"s_mov_b32 exec_hi, {mask}")
        e(f"global_store_dwordx4 v{vaddr}, {vr(d,4)}, {sr(sWS,2)} sc1")
        if mask: e("s_mov_b64 exec, -1")
        g.lab(f"{lab}_f")
    def smem_gate(lab, base, shift, stride, off, tagi):
        if not gate: return
        e(f"s_lshl_b32 s{s_t0}, s{s_h}, {shift}")
        e(f"s_add_u32 s{s_t0}, s{s_t0}, {base+off}")
        e(f"s_add_u32 s{sG}, s{sWS}, s{s_t0}")
        e(f"s_addc_u32 s{sG+1}, s{sWS+1}, 0")
        e(f"s_movk_i32 s{s_t1}, 200")
        if gw: e(f"s_waitcnt vmcnt({gw})")
        g.lab(lab)
        for p in range(8): e(f"s_load_dword s{sID+p}, {sr(sG,2)}, {p*stride} glc")
        e(f"s_sub_u32 s{s_t1}, s{s_t1}, 1")
        e(f"s_cbranch_scc1 {lab}_to")
        e("s_waitcnt lgkmcnt(0)")
        for p in range(8): e(f"s_xor_b32 s{sID+p}, s{sID+p}, s{sT[tagi]}")
        e(f"s_or_b64 {sr(sID,2)}, {sr(sID,2)}, {sr(sID+2,2)}")
        e(f"s_or_b64 {sr(sID+4,2)}, {sr(sID+4,2)}, {sr(sID+6,2)}")
        e(f"s_or_b64 {sr(sID,2)}, {sr(sID,2)}, {sr(sID+4,2)}")
        e(f"s_or_b32 s{sID}, s{sID}, s{sID+1}")
        e(f"s_and_b32 s{sID}, s{sID}, 0xff")
        e(f"s_cbranch_scc1 {lab}")
        g.lab(f"{lab}_to")
        e("s_waitcnt lgkmcnt(0)")
    def afrag(dst, val):
        e(f"v_cvt_pk_bf16_f32 v{dst+3}, v{val}, v{val}")
        for i in range(4): e(f"v_and_b32 v{dst+i}, v{msk+i}, v{dst+3}")
    def tag4(d):
        for i in range(4): e(f"v_and_or_b32 v{d+i}, v{d+i}, v{vFF}, s{sT[i]}")
    def poll_tail(acc, lab, sleep=0):
        e(f"v_and_b32 v{acc}, 0xff, v{acc}")
        e(f"v_cmp_ne_u32 vcc, 0, v{acc}")
        e(f"s_cbranch_vccz {lab}_ok")
        if sleep: e(f"s_sleep {sleep}")
        e(f"s_sub_u32 s{s_cnt}, s{s_cnt}, 1")
        e(f"s_cmp_lg_u32 s{s_cnt}, 0")
        e(f"s_cbranch_scc1 {lab}")
        g.lab(f"{lab}_ok")
    npub = [0]
    def publish(vaddr, d, slow=False, n4=4):
        if slow or not fast:
            e(f"global_store_dwordx{n4} v{vaddr}, {vr(d,n4)}, {sr(sWS,2)} sc1"); return
        n = npub[0]; npub[0] += 1
        e(f"s_cmp_eq_u32 s{s_fast}, 0")
        e(f"s_cbranch_scc1 L_ps{n}")
        e(f"global_store_dwordx{n4} v{vaddr}, {vr(d,n4)}, {sr(sWS,2)}")
        e(f"s_branch L_pd{n}")
        g.lab(f"L_ps{n}")
        e(f"global_store_dwordx{n4} v{vaddr}, {vr(d,n4)}, {sr(sWS,2)} sc1")
        g.lab(f"L_pd{n}")
    def sum_n(base, n):
        step = 1
        while step < n:
            for i in range(0, n, 2*step):
                for r in range(4):
                    e(f"v_add_f32 v{base+4*i+r}, v{base+4*i+r}, v{base+4*(i+step)+r}")
            step *= 2
    def tagpair(da, db, cond):
        e(f"v_mov_b32 v{t0}, s{sT[0]}"); e(f"v_mov_b32 v{t1}, s{sT[1]}")
        e(f"v_mov_b32 v{t2}, s{sT[2]}"); e(f"v_mov_b32 v{t3}, s{sT[3]}")
        e(f"v_cndmask_b32 v{da}, v{t0}, v{t2}, {sr(cond,2)}")
        e(f"v_cndmask_b32 v{db}, v{t1}, v{t3}, {sr(cond,2)}")

    vX, vXr, vW, vPub, vl16, c2, vPf = [g.v() for _ in range(7)]
    xd = g.v(8); xl = g.v(8); xr = g.v(8)
    W = g.v(64); AF = g.v(8); D = g.v(4)
    aux_end = g.nv
    s_str, s_off, s_lim = 13, 14, 15
    if prio: e("s_setprio 3")
    if pf:
        e(f"s_getpc_b64 {sr(sG,2)}")
        g.lab("L_pc")
        e(f"s_lshr_b32 s{s_t0}, s2, 3")
        e(f"s_lshl_b32 s{s_t0}, s{s_t0}, 9")
        e(f"s_lshl_b32 s{s_t1}, s{s_wv}, 8")
        e(f"s_add_u32 s{s_t0}, s{s_t0}, s{s_t1}")
        e(f"v_lshl_add_u32 v{vPf}, v{lane}, 7, s{s_t0}")
        e(f"v_min_u32 v{vPf}, L_end-L_pc, v{vPf}")
        e("s_mov_b64 exec, 3")
        e(f"global_load_dword v{vPf}, v{vPf}, {sr(sG,2)}")
        e("s_mov_b64 exec, -1")
    e(f"v_lshlrev_b32 v{t0}, 2, v{lane}")
    e(f"v_mov_b32 v{t1}, 0")
    e(f"ds_write_b32 v{t0}, v{t1} offset:{L_FL}")
    e(f"s_movk_i32 s{s_str}, 2752")
    e(f"s_movk_i32 s{s_t1}, 96")
    e(f"s_cmp_eq_u32 s{s_wv}, 0")
    e(f"s_cmovk_i32 s{s_str}, 8192")
    e(f"s_cmovk_i32 s{s_t1}, 256")
    e(f"s_cselect_b32 s{s_lim}, s{s_h}, s{s_g}")
    e(f"s_lshl_b32 s{srdA+2}, s{s_str}, 9")
    e(f"s_mul_i32 s{s_t1}, s{s_t1}, s{s_lim}")
    e(f"s_mul_i32 s{s_lim}, s{s_g}, 6")
    e(f"s_sub_i32 s{s_lim}, 172, s{s_lim}")
    e(f"s_min_i32 s{s_lim}, s{s_lim}, 6")
    e(f"s_cmp_eq_u32 s{s_wv}, 0")
    e(f"s_cselect_b32 s{s_lim}, 16, s{s_lim}")
    e(f"s_mov_b32 s{srdA+3}, 0x20000")
    e(f"v_and_b32 v{t0}, 7, v0")
    e(f"v_lshl_add_u32 v{vX}, v{t0}, 5, v{bl}")
    e(f"v_lshl_add_u32 v{vX}, v{kg}, 8, v{vX}")
    e(f"s_lshl_b32 s{s_t0}, s{s_j}, 6")
    e(f"v_lshl_add_u32 v{t1}, v{kg}, 4, s{s_t0}")
    e(f"v_lshl_add_u32 v{vXr}, v{t1}, 1, v{bl}")
    e(f"v_mul_u32_u24 v{vW}, s{s_str}, v{t1}")
    e(f"v_add3_u32 v{vW}, v{vW}, v{m16}, s{s_t1}")
    e(f"v_cmp_gt_i32 vcc, s{s_lim}, v{m}")
    e(f"v_bfrev_b32 v{t2}, 1")
    e(f"s_mov_b32 s{s_off}, 0")
    e(f"s_cmp_eq_u32 s{s_wv}, 0")
    e(f"v_cndmask_b32 v{vW}, v{t2}, v{vW}, vcc")
    e("s_waitcnt lgkmcnt(0)")
    e(f"s_cselect_b32 s{srdA}, s{sWQ}, s{sW1}")
    e(f"s_cselect_b32 s{srdA+1}, s{sWQ+1}, s{sW1+1}")
    e(f"s_load_dword s{s_E}, {sr(sWS,2)}, 0")
    stamp()
    e(f"global_load_dwordx4 {vr(xd,4)}, v{vX}, {sr(sX,2)}")
    e(f"global_load_dwordx4 {vr(xd+4,4)}, v{vX}, {sr(sX,2)} offset:16")
    e(f"global_load_dwordx4 {vr(xr,4)}, v{vXr}, {sr(sX,2)}")
    e(f"global_load_dwordx4 {vr(xr+4,4)}, v{vXr}, {sr(sX,2)} offset:16")
    for t in range(16):
        e(f"buffer_load_dwordx4 {vr(W+4*t,4)}, v{vW}, {sr(srdA,4)}, s{s_off} offen{fW}")
        if t < 15: e(f"s_add_u32 s{s_off}, s{s_off}, s{s_str}")
    e("s_barrier")
    stamp()
    e(f"v_lshlrev_b32 v{vl16}, 4, v{lane}")
    e(f"v_and_b32 v{t1}, 1, v{kg}")
    e(f"v_lshl_add_u32 v{c2}, v{m}, 1, v{t1}")
    e(f"s_cmp_eq_u32 s{s_wv}, 0")
    e("s_cbranch_scc0 L_fx")
    vFo, vB2o, xo, b2v, gv, vIn, vQp, vQw = [g.v() for _ in range(8)]
    vSc, vHpa, vHpb, vTa, vTb, b1b = [g.v() for _ in range(6)]
    b1a = g.v(2); w2 = g.v(24)
    s_fr = 42
    e(f"s_lshl_b32 s{s_t0}, s{s_wgi}, 10")
    e(f"s_add_u32 s{s_t0}, s{s_t0}, {QBASE}")
    e(f"v_add_u32 v{vPub}, s{s_t0}, v{vl16}")
    e("s_branch L_ln")
    g.lab("L_fx")
    if tlb:
        e(f"s_lshl_b32 s{s_t0}, s{s_h}, 20")
        e(f"s_add_u32 s{s_t0}, s{s_t0}, {3072*256}")
        e(f"v_lshl_add_u32 v{t0}, v{lane}, 25, s{s_t0}")
        e(f"s_lshl_b32 s{s_t0}, s{s_h}, 17")
        e(f"v_mov_b32 v{t1}, s{s_t0}")
        e(f"v_mov_b32 v{t2}, {QBASE}")
        e("s_mov_b64 exec, 3")
        e(f"global_load_dword v{vFo}, v{t0}, {sr(sV,2)}")
        e("s_mov_b64 exec, 1")
        e(f"global_load_dword v{vB2o}, v{t1}, {sr(sWO,2)}")
        e(f"global_load_dword v{xo}, v{t2}, {sr(sW2,2)}")
        e(f"global_load_dword v{b2v}, v{t2}, {sr(sWS,2)} offset:-64")
        e("s_mov_b64 exec, -1")
    e(f"v_lshl_add_u32 v{vPub}, v{kg}, 7, v{m16}")
    e(f"s_lshl_b32 s{s_t0}, s{s_wgi}, 9")
    e(f"s_add_u32 s{s_t0}, s{s_t0}, {HBASE}")
    e(f"v_add_u32 v{vPub}, s{s_t0}, v{vPub}")
    g.lab("L_ln")
    masks_and_tags(False)
    e("s_waitcnt vmcnt(18)")
    stamp()
    for i in range(8):
        e(f"v_lshlrev_b32 v{xl+i}, 16, v{xd+i}")
        e(f"v_and_b32 v{xd+i}, s{s_hi}, v{xd+i}")
    e(f"v_add_f32 v{t0}, v{xl}, v{xd}")
    e(f"v_add_f32 v{t1}, v{xl+1}, v{xd+1}")
    for i in range(2, 8, 2):
        e(f"v_add_f32 v{t0}, v{t0}, v{xl+i}")
        e(f"v_add_f32 v{t1}, v{t1}, v{xl+i+1}")
        e(f"v_add_f32 v{t0}, v{t0}, v{xd+i}")
        e(f"v_add_f32 v{t1}, v{t1}, v{xd+i+1}")
    e(f"v_add_f32 v{t0}, v{t0}, v{t1}")
    red8("v_add_f32", [t0]); redgrp("v_add_f32", t0, t1)
    e(f"v_mul_f32 v{t0}, 0x3b000000, v{t0}")
    for i in range(8):
        e(f"v_sub_f32 v{xl+i}, v{xl+i}, v{t0}")
        e(f"v_sub_f32 v{xd+i}, v{xd+i}, v{t0}")
    e(f"v_mul_f32 v{t1}, v{xl}, v{xl}")
    e(f"v_mul_f32 v{t2}, v{xd}, v{xd}")
    for i in range(1, 8):
        e(f"v_fmac_f32 v{t1}, v{xl+i}, v{xl+i}")
        e(f"v_fmac_f32 v{t2}, v{xd+i}, v{xd+i}")
    e(f"v_add_f32 v{t1}, v{t1}, v{t2}")
    red8("v_add_f32", [t1]); redgrp("v_add_f32", t1, t2)
    e(f"v_mul_f32 v{t1}, 0x3b000000, v{t1}")
    rbf2(t0, t1, t2)
    e(f"v_add_f32 v{t1}, {EPS:#x}, v{t1}")
    rbf(t1, t1)
    e(f"v_sqrt_f32 v{t1}, v{t1}")
    e("s_nop 0")
    rbf(t1, t1)
    e(f"v_rcp_f32 v{t1}, v{t1}")
    e("s_waitcnt vmcnt(16)")
    for i in range(8):
        e(f"v_lshlrev_b32 v{xl+i}, 16, v{xr+i}")
        e(f"v_and_b32 v{xd+i}, s{s_hi}, v{xr+i}")
        e(f"v_sub_f32 v{xl+i}, v{xl+i}, v{t0}")
        e(f"v_sub_f32 v{xd+i}, v{xd+i}, v{t0}")
        rbf2(xl+i, xd+i, t2)
        e(f"v_mul_f32 v{xl+i}, v{xl+i}, v{t1}")
        e(f"v_mul_f32 v{xd+i}, v{xd+i}, v{t1}")
    stamp()
    val = lambda t: (xl if t % 2 == 0 else xd) + t // 2
    afrag(AF, val(0))
    for t in range(16):
        if t < 15: afrag(AF + 4*((t+1) % 2), val(t+1))
        else: e("s_nop 1")
        if t % 4 == 0: e(f"s_waitcnt vmcnt({12 - t})")
        mfma(D, AF + 4*(t % 2), W + 4*t, None if t == 0 else D)
    stamp()
    do_tags()
    tag4(D)
    e(f"s_mov_b32 s{s_cnt}, {spin}")
    e(f"s_cmp_eq_u32 s{s_wv}, 0")
    e("s_cbranch_scc0 L_f2")
    nst_split = nst[0]
    P = W
    if idg: e(f"global_store_dwordx4 v{vPub}, {vr(D,4)}, {sr(sWS,2)}")
    else: publish(vPub, D, True)
    stamp()
    e(f"s_lshl_b32 s{s_t0}, s{s_j}, 2")
    e(f"s_add_u32 s{s_t0}, s{s_t0}, s{s_ido}")
    e(f"v_mov_b32 v{t0}, s{s_t0}")
    e(f"v_mov_b32 v{t1}, s{s_idw}")
    e("s_mov_b64 exec, 1")
    e(f"global_store_dword v{t0}, v{t1}, {sr(sWS,2)} sc1")
    e("s_mov_b64 exec, -1")
    vW2a, vW2b = vX, vXr
    vI = g.v(4)
    e(f"s_mul_i32 s{s_fr}, s{s_g}, 48")
    e(f"s_lshl_b32 s{s_t0}, s{s_j1}, 2")
    e(f"s_add_u32 s{s_fr}, s{s_fr}, s{s_t0}")
    e(f"s_lshl_b32 s{s_t0}, s{s_fr}, 10")
    e(f"s_lshl_b32 s{s_t1}, s{s_cb}, 8")
    e(f"s_add_u32 s{s_t0}, s{s_t0}, s{s_t1}")
    e(f"v_lshl_add_u32 v{vW2a}, v{kg}, 13, v{m16}")
    e(f"v_add_u32 v{vW2a}, s{s_t0}, v{vW2a}")
    e(f"v_and_b32 v{t1}, 1, v{kg}")
    e(f"v_cmp_eq_u32 {sr(sM[0],2)}, 1, v{t1}")
    e(f"v_lshrrev_b32 v{t0}, 1, v{kg}")
    e(f"v_lshlrev_b32 v{t3}, 1, v{t1}")
    e(f"v_lshl_add_u32 v{t3}, v{t0}, 3, v{t3}")
    e(f"s_add_u32 s{s_t0}, s{s_t0}, {32*1024}")
    e(f"v_lshl_add_u32 v{vW2b}, v{t3}, 10, v{m16}")
    e(f"v_add_u32 v{vW2b}, s{s_t0}, v{vW2b}")
    srd(srdB, sW2, 1376*1024); srd(srdC, sB1, 2752)
    for t in range(4):
        e(f"buffer_load_dwordx4 {vr(w2+4*t,4)}, v{vW2a}, {sr(srdB,4)}, 0 offen offset:{t*1024}{fW}")
    for t in range(2):
        e(f"buffer_load_dwordx4 {vr(w2+16+4*t,4)}, v{vW2b}, {sr(srdB,4)}, 0 offen offset:{t*1024}{fW}")
    e(f"s_lshl_b32 s{s_t0}, s{s_fr}, 1")
    e(f"v_lshl_add_u32 v{t2}, v{kg}, 4, s{s_t0}")
    e(f"v_lshl_add_u32 v{t3}, v{t3}, 1, s{s_t0}")
    e(f"buffer_load_dwordx2 {vr(b1a,2)}, v{t2}, {sr(srdC,4)}, 0 offen")
    e(f"buffer_load_dword v{b1b}, v{t3}, {sr(srdC,4)}, 0 offen offset:64")
    s_c, s_k = 13, 14
    e(f"s_lshl_b32 s{s_c}, s{s_h}, 1")
    e(f"s_add_u32 s{s_c}, s{s_c}, s{s_j1}")
    e(f"s_and_b32 s{s_k}, s{s_c}, 15")
    e(f"v_lshlrev_b32 v{t1}, 2, v{t1}")
    e(f"v_and_or_b32 v{t1}, v{kg}, 2, v{t1}")
    e(f"v_and_b32 v{t2}, 3, v{lane}")
    e(f"v_lshl_add_u32 v{t1}, v{t2}, 4, v{t1}")
    e(f"s_lshr_b32 s{s_t0}, s{s_c}, 4")
    e(f"s_lshl_b32 s{s_t0}, s{s_t0}, 8")
    e(f"s_and_b32 s{s_t1}, s{s_k}, 3")
    e(f"s_lshl_b32 s{s_t1}, s{s_t1}, 6")
    e(f"s_add_u32 s{s_t0}, s{s_t0}, s{s_t1}")
    e(f"s_and_b32 s{s_t1}, s{s_k}, 4")
    e(f"s_lshl_b32 s{s_t1}, s{s_t1}, 1")
    e(f"s_add_u32 s{s_t0}, s{s_t0}, s{s_t1}")
    e(f"v_add_u32 v{vB2o}, s{s_t0}, v{t1}")
    e(f"s_and_b32 s{s_t1}, s{s_k}, 8")
    e(f"s_lshl_b32 s{s_t1}, s{s_t1}, 7")
    e(f"v_add_u32 v{vFo}, s{s_t1}, v{vB2o}")
    e(f"global_load_ushort v{xo}, v{vFo}, {sr(sX,2)}")
    e(f"global_load_ushort v{b2v}, v{vB2o}, {sr(sB2,2)}")
    e(f"s_lshr_b32 s{s_t0}, s{s_c}, 4")
    e(f"s_lshl_b32 s{s_t0}, s{s_t0}, 16")
    e(f"s_lshl_b32 s{s_t1}, s{s_k}, 6")
    e(f"s_add_u32 s{s_t0}, s{s_t0}, s{s_t1}")
    e(f"s_add_u32 s{s_t0}, s{s_t0}, {FIN}")
    e(f"v_lshl_add_u32 v{vI}, v{t2}, 4, s{s_t0}")
    e(f"v_lshrrev_b32 v{t2}, 2, v{lane}")
    e(f"v_lshl_add_u32 v{vI}, v{t2}, 10, v{vI}")
    for i in range(1, 4): e(f"v_add_u32 v{vI+i}, {i*16384}, v{vI}")
    e(f"s_lshl_b32 s{s_t1}, s{s_wgi}, 10")
    e(f"s_add_u32 s{s_t1}, s{s_t1}, {ABASE}")
    e(f"v_lshl_add_u32 v{vPf}, v{lane}, 7, s{s_t1}")
    e("s_mov_b64 exec, 0xff")
    if "npt" not in xp: e(f"global_load_dword v{vPf}, v{vPf}, {sr(sWS,2)} sc1")
    e("s_mov_b64 exec, -1")
    tagpair(vTa, vTb, sM[0])
    e(f"s_lshl_b32 s{s_t0}, s{s_h}, 13")
    e(f"s_add_u32 s{s_t0}, s{s_t0}, {QBASE+4096}")
    e(f"v_add_u32 v{vQp}, s{s_t0}, v{vl16}")
    e(f"v_lshrrev_b32 v{t1}, 1, v{kg}")
    e(f"v_lshlrev_b32 v{vQw}, 3, v{c2}")
    e(f"v_lshl_add_u32 v{vQw}, v{t1}, 8, v{vQw}")
    e(f"s_lshl_b32 s{s_t0}, s{s_cb}, 16")
    e(f"s_lshl_b32 s{s_t1}, s{s_c}, 10")
    e(f"s_add_u32 s{s_t0}, s{s_t0}, s{s_t1}")
    e(f"s_add_u32 s{s_t0}, s{s_t0}, {FIN}")
    e(f"v_add_u32 v{vSc}, s{s_t0}, v{vl16}")
    e(f"v_and_b32 v{t0}, 7, v{m}")
    e(f"v_lshrrev_b32 v{t2}, 2, v{bl}")
    e(f"v_lshl_add_u32 v{t2}, v{t0}, 9, v{t2}")
    e(f"s_lshl_b32 s{s_t0}, s{s_h}, 12")
    e(f"s_lshl_b32 s{s_t1}, s{s_j1}, 7")
    e(f"s_add_u32 s{s_t0}, s{s_t0}, s{s_t1}")
    e(f"s_add_u32 s{s_t0}, s{s_t0}, {HBASE}")
    e(f"v_add_u32 v{t2}, s{s_t0}, v{t2}")
    e(f"v_lshl_add_u32 v{vHpa}, v{kg}, 4, v{t2}")
    e(f"v_lshl_add_u32 v{vHpb}, v{kg}, 3, v{t2}")
    e(f"v_mov_b32 v{t3}, 0")
    e(f"v_mov_b32 v{t2}, 1")
    if idg: id_gate("L_gq", vPub, D, None)
    else: smem_gate("L_gq", QBASE, 13, 1024, 1020, 3)
    stamp()
    hp = xl; AF6 = W + 32
    def hloads(sc=" sc1"):
        if "nH" in xp:
            e(f"global_load_dword v{hp}, v{t3}, {sr(sX,2)}"); e(f"global_load_dword v{hp}, v{t3}, {sr(sX,2)}"); return
        e(f"global_load_dwordx4 {vr(hp,4)}, v{vHpa}, {sr(sWS,2)}{sc}")
        e(f"global_load_dwordx2 {vr(hp+4,2)}, v{vHpb}, {sr(sWS,2)} offset:64{sc}")
    g.lab("L_pq")
    for p in range(8):
        e(f"global_load_dwordx4 {vr(P+4*p,4)}, v{vQp}, {sr(sWS,2)} offset:{p*1024-4096} sc1")
    hloads("")
    for p in range(8):
        e(f"s_waitcnt vmcnt({9-p})")
        for r in range(4): e(f"v_xor_b32 v{P+4*p+r}, s{sT[r]}, v{P+4*p+r}")
        if p == 0: e(f"v_or_b32 v{t0}, v{P}, v{P+1}")
        else: e(f"v_or3_b32 v{t0}, v{t0}, v{P+4*p}, v{P+4*p+1}")
        e(f"v_or3_b32 v{t0}, v{t0}, v{P+4*p+2}, v{P+4*p+3}")
    poll_tail(t0, "L_pq")
    stamp()
    sum_n(P, 8)
    e(f"v_cvt_pk_bf16_f32 v{P}, v{P}, v{P+1}")
    e(f"v_cvt_pk_bf16_f32 v{P+1}, v{P+2}, v{P+3}")
    e(f"ds_write_b64 v{vQw}, {vr(P,2)} offset:{L_Q}")
    e("s_waitcnt lgkmcnt(0)")
    e("s_mov_b64 exec, 1")
    e(f"ds_write_b32 v{t3}, v{t2} offset:{L_FL}")
    e("s_mov_b64 exec, -1")
    if not idg: id_issue()
    e(f"s_mov_b32 s{s_cnt}, {spin}")
    e("s_branch L_ph_c")
    g.lab("L_ph")
    hloads()
    g.lab("L_ph_c")
    e("s_waitcnt vmcnt(0)")
    for r in range(4): e(f"v_xor_b32 v{hp+r}, s{sT[r]}, v{hp+r}")
    e(f"v_xor_b32 v{hp+4}, v{vTa}, v{hp+4}")
    e(f"v_xor_b32 v{hp+5}, v{vTb}, v{hp+5}")
    e(f"v_or_b32 v{t0}, v{hp+4}, v{hp+5}")
    for i in range(0, 4, 2): e(f"v_or3_b32 v{t0}, v{t0}, v{hp+i}, v{hp+i+1}")
    if "nH" in xp: e(f"v_mov_b32 v{t0}, 0")
    poll_tail(t0, "L_ph")
    red8("v_add_f32", [hp+i for i in range(6)])
    for i in range(0, 6, 2): rbf2(hp+i, hp+i+1, t0)
    bsrc = [b1a, b1a+1, b1b]
    for i in range(3):
        e(f"v_lshlrev_b32 v{t0}, 16, v{bsrc[i]}")
        e(f"v_and_b32 v{t1}, s{s_hi}, v{bsrc[i]}")
        e(f"v_add_f32 v{hp+2*i}, v{hp+2*i}, v{t0}")
        e(f"v_add_f32 v{hp+2*i+1}, v{hp+2*i+1}, v{t1}")
    for i in range(0, 6, 2): rbf2(hp+i, hp+i+1, t0)
    for i in range(6): e(f"v_max_f32 v{hp+i}, 0, v{hp+i}")
    for i in range(6): e(f"v_mul_f32 v{hp+i}, v{hp+i}, v{hp+i}")
    for i in range(6): afrag(AF6+4*i, hp+i)
    e("s_nop 1")
    for i in range(6): mfma(D, AF6+4*i, w2+4*i, None if i == 0 else D)
    vMr, vOr, vMs, vZ = vX, vXr, vW, vPf
    fw = xd; MLv = xl
    e("s_nop 2")
    e(f"v_and_b32 v{vZ}, 1, v{lane}")
    e(f"v_lshlrev_b32 v{vMr}, 6, v{vZ}")
    e(f"v_lshrrev_b32 v{t0}, 1, v{lane}")
    e(f"v_mul_u32_u24 v{vOr}, {4*OPS}, v{vZ}")
    e(f"v_lshl_add_u32 v{vOr}, v{t0}, 4, v{vOr}")
    tag4(D)
    if "nF" not in xp and not flate: e(f"global_store_dwordx4 v{vSc}, {vr(D,4)}, {sr(sWS,2)} sc1")
    stamp()
    e(f"s_lshl_b32 s{s_t0}, s{s_wgi}, 4")
    e(f"s_add_u32 s{s_t0}, s{s_t0}, {MLBASE}")
    e(f"v_lshl_add_u32 v{vMs}, v{vZ}, 3, s{s_t0}")
    e(f"s_lshl_b32 s{s_t0}, s{s_h}, 13")
    e(f"s_lshl_b32 s{s_t1}, s{s_j}, {4+al}")
    e(f"s_add_u32 s{s_t0}, s{s_t0}, s{s_t1}")
    e(f"s_add_u32 s{s_t0}, s{s_t0}, {ABASE}")
    e(f"v_lshrrev_b32 v{t0}, {al}, v{lane}")
    e(f"v_lshl_add_u32 v{vPub}, v{t0}, {7+al}, s{s_t0}")
    e(f"v_and_b32 v{t0}, {(1<<al)-1}, v{lane}")
    e(f"v_lshl_add_u32 v{vPub}, v{t0}, 4, v{vPub}")
    e("s_waitcnt lgkmcnt(0)")
    if not idg: id_check()
    e(f"v_cmp_eq_u32 {sr(sM[0],2)}, 1, v{vZ}")
    tagpair(vTa, vTb, sM[0])
    e(f"v_mov_b32 v{vZ}, 0")
    e(f"v_lshlrev_b32 v{b2v}, 16, v{b2v}")
    e(f"v_lshlrev_b32 v{xo}, 16, v{xo}")
    e(f"s_mov_b32 s{s_cnt}, {spin*16}")
    g.lab("L_wm")
    for i in range(4): e(f"ds_read_b128 {vr(P+4*i,4)}, v{vMr} offset:{L_ML+16*i}")
    e("s_waitcnt lgkmcnt(0)")
    e(f"v_and_b32 v{t0}, v{P+2}, v{P+6}")
    e(f"v_and_b32 v{t1}, v{P+10}, v{P+14}")
    e(f"v_and_b32 v{t0}, v{t0}, v{t1}")
    e(f"v_cmp_ne_u32 vcc, 1, v{t0}")
    e("s_cbranch_vccz L_wm_ok")
    e("s_sleep 1")
    e(f"s_sub_u32 s{s_cnt}, s{s_cnt}, 1")
    e(f"s_cmp_lg_u32 s{s_cnt}, 0")
    e("s_cbranch_scc1 L_wm")
    g.lab("L_wm_ok")
    e(f"v_max3_f32 v{MLv}, v{P}, v{P+4}, v{P+8}")
    e(f"v_max_f32 v{MLv}, v{MLv}, v{P+12}")
    for i in range(4): e(f"v_sub_f32 v{fw+i}, v{P+4*i}, v{MLv}")
    for i in range(4): e(f"v_mul_f32 v{fw+i}, s{s_l2e}, v{fw+i}")
    for i in range(4): e(f"v_exp_f32 v{fw+i}, v{fw+i}")
    e(f"v_mul_f32 v{MLv+1}, v{fw}, v{P+1}")
    for i in range(1, 4): e(f"v_fmac_f32 v{MLv+1}, v{fw+i}, v{P+4*i+1}")
    e(f"v_and_or_b32 v{MLv}, v{MLv}, v{vFF}, v{vTa}")
    e(f"v_and_or_b32 v{MLv+1}, v{MLv+1}, v{vFF}, v{vTb}")
    e("s_mov_b64 exec, 3")
    publish(vMs, MLv, n4=2)
    e("s_mov_b64 exec, -1")
    Q = P + 16; QB = P + 32
    def inl(Q):
        for i in range(4): e(f"global_load_dwordx4 {vr(Q+4*i,4)}, v{vI+i}, {sr(sWS,2)} sc1")
    def chk(Q, extra=0):
        for i in range(4):
            e(f"s_waitcnt vmcnt({3-i+extra})")
            for r in range(4): e(f"v_xor_b32 v{Q+4*i+r}, s{sT[r]}, v{Q+4*i+r}")
            if i == 0: e(f"v_or_b32 v{t0}, v{Q}, v{Q+1}")
            else: e(f"v_or3_b32 v{t0}, v{t0}, v{Q+4*i}, v{Q+4*i+1}")
            e(f"v_or3_b32 v{t0}, v{t0}, v{Q+4*i+2}, v{Q+4*i+3}")
            if i:
                for r in range(4): e(f"v_add_f32 v{Q+r}, v{Q+r}, v{Q+4*i+r}")
    def red64(Q):
        e(f"v_permlane32_swap_b32 v{Q}, v{Q+1}")
        e(f"v_permlane32_swap_b32 v{Q+2}, v{Q+3}")
        e(f"v_add_f32 v{Q}, v{Q}, v{Q+1}")
        e(f"v_add_f32 v{Q+2}, v{Q+2}, v{Q+3}")
        e("s_nop 1")
        e(f"v_permlane16_swap_b32 v{Q}, v{Q+2}")
        e(f"v_add_f32 v{Q}, v{Q}, v{Q+2}")
        for ctl in ("row_ror:8", "row_ror:4"):
            e("s_nop 1"); dpp("v_add_f32", Q, Q, Q, ctl)
        rbf(Q, Q)
    if not flate:
        e(f"s_cmp_ge_u32 s{s_j}, 2")
        e("s_cbranch_scc1 L_nof")
        inl(Q)
        g.lab("L_nof")
    e(f"s_mov_b32 s{s_cnt}, {spin}")
    e("s_barrier")
    for i in range(4): e(f"ds_read_b128 {vr(P+4*i,4)}, v{vOr} offset:{L_OP+OPS*i}")
    e("s_waitcnt lgkmcnt(3)")
    for r in range(4): e(f"v_mul_f32 v{P+r}, v{P+r}, v{fw}")
    for i in range(1, 4):
        e(f"s_waitcnt lgkmcnt({3-i})")
        for r in range(4): e(f"v_fmac_f32 v{P+r}, v{P+4*i+r}, v{fw+i}")
    tag4(P)
    publish(vPub, P)
    stamp()
    if not flate:
        if b4b: e("s_barrier")
        e(f"s_cmp_ge_u32 s{s_j}, 2")
        e("s_cbranch_scc1 L_noep")
        s_ph = 15
        e(f"s_mov_b32 s{s_ph}, 0")
        chk(Q, 1)
        e(f"v_and_b32 v{t0}, 0xff, v{t0}")
        e(f"v_cmp_ne_u32 vcc, 0, v{t0}")
        e("s_cbranch_vccz L_pf_ok")
        e(f"s_mov_b32 s{s_ph}, 1")
        e("s_barrier")
        if b6: e("s_barrier")
        g.lab("L_pf")
        inl(Q)
        chk(Q)
        poll_tail(t0, "L_pf")
        stamp()
        for i in range(4): e(f"v_add_u32 v{vI+i}, {BIN-FIN}, v{vI+i}")
        red64(Q)
        e(f"v_add_f32 v{Q}, v{Q}, v{b2v}")
        rbf(Q, Q)
        e(f"v_mul_f32 v{t0}, s{s_l2e}, v{Q}")
        e(f"v_exp_f32 v{t0}, -v{t0}")
        e("s_nop 0")
        e(f"v_add_f32 v{t0}, 1.0, v{t0}")
        e(f"v_rcp_f32 v{t0}, v{t0}")
        e("s_nop 0")
        e(f"v_mul_f32 v{gv}, v{Q}, v{t0}")
        rbf(gv, gv)
        e(f"s_mov_b32 s{s_cnt}, {spin}")
        e(f"s_cmp_eq_u32 s{s_ph}, 1")
        e("s_cbranch_scc1 L_nb")
        e("s_barrier")
        if b6: e("s_barrier")
        g.lab("L_nb")
        inl(QB)
    else:
        if flate == 1: e(f"global_store_dwordx4 v{vSc}, {vr(D,4)}, {sr(sWS,2)} sc1")
        e("s_barrier")
        if flate == 2:
            e("s_barrier")
            e(f"global_store_dwordx4 v{vSc}, {vr(D,4)}, {sr(sWS,2)} sc1")
        e(f"s_cmp_ge_u32 s{s_j}, 2")
        e("s_cbranch_scc1 L_noep")
        vJ = w2
        for i in range(4): e(f"v_add_u32 v{vJ+i}, {BIN-FIN}, v{vI+i}")
        if flate == 1: e("s_barrier")
        e("s_barrier")
        g.lab("L_pf")
        inl(Q)
        if bsl: e(f"s_sleep {bsl}")
        for i in range(4): e(f"global_load_dwordx4 {vr(QB+4*i,4)}, v{vJ+i}, {sr(sWS,2)} sc1")
        chk(Q, 4)
        poll_tail(t0, "L_pf")
        stamp()
        for i in range(4): e(f"v_mov_b32 v{vI+i}, v{vJ+i}")
        red64(Q)
        e(f"v_add_f32 v{Q}, v{Q}, v{b2v}")
        rbf(Q, Q)
        e(f"v_mul_f32 v{t0}, s{s_l2e}, v{Q}")
        e(f"v_exp_f32 v{t0}, -v{t0}")
        e("s_nop 0")
        e(f"v_add_f32 v{t0}, 1.0, v{t0}")
        e(f"v_rcp_f32 v{t0}, v{t0}")
        e("s_nop 0")
        e(f"v_mul_f32 v{gv}, v{Q}, v{t0}")
        rbf(gv, gv)
        e(f"s_mov_b32 s{s_cnt}, {spin}")
    if bp == 1:
        e("s_branch L_pb_c")
        g.lab("L_pb")
        inl(QB)
        g.lab("L_pb_c")
        chk(QB)
        poll_tail(t0, "L_pb")
    else:
        sets = [QB, P + 48, P][:bp]
        ACC = xd
        for k in range(1, bp - 1): inl(sets[k])
        g.lab("L_pb")
        for k in range(bp):
            inl(sets[(k + bp - 1) % bp])
            Z = sets[k]; base = 4 * (bp - 1)
            for i in range(4):
                e(f"s_waitcnt vmcnt({base+3-i})")
                for r in range(4): e(f"v_xor_b32 v{Z+4*i+r}, s{sT[r]}, v{Z+4*i+r}")
                if i == 0: e(f"v_or_b32 v{t0}, v{Z}, v{Z+1}")
                else: e(f"v_or3_b32 v{t0}, v{t0}, v{Z+4*i}, v{Z+4*i+1}")
                e(f"v_or3_b32 v{t0}, v{t0}, v{Z+4*i+2}, v{Z+4*i+3}")
                if i:
                    for r in range(4): e(f"v_add_f32 v{ACC+r}, v{(Z if i == 1 else ACC)+r}, v{Z+4*i+r}")
            e(f"v_and_b32 v{t0}, 0xff, v{t0}")
            e(f"v_cmp_ne_u32 vcc, 0, v{t0}")
            e("s_cbranch_vccz L_pb_ok")
        e(f"s_sub_u32 s{s_cnt}, s{s_cnt}, 1")
        e(f"s_cmp_lg_u32 s{s_cnt}, 0")
        e("s_cbranch_scc1 L_pb")
        g.lab("L_pb_ok")
        QB = ACC
    stamp()
    red64(QB)
    e(f"v_mul_f32 v{QB}, v{QB}, v{gv}")
    rbf(QB, QB)
    e(f"v_add_f32 v{QB}, v{QB}, v{xo}")
    e(f"v_cvt_pk_bf16_f32 v{QB}, v{QB}, v{QB}")
    e("s_mov_b32 exec_lo, 0x000f000f"); e("s_mov_b32 exec_hi, 0x000f000f")
    e(f"global_store_short v{vFo}, v{QB}, {sr(sOUT,2)}")
    e("s_cmp_lg_u32 s2, 0")
    e("s_cbranch_scc1 L_noep")
    e(f"s_add_u32 s{s_t0}, s{s_E}, 1")
    e(f"v_mov_b32 v{t0}, s{s_t0}")
    e("s_mov_b64 exec, 1")
    e(f"global_store_dword v{vZ}, v{t0}, {sr(sWS,2)}")
    g.lab("L_noep")
    stamp()
    dump_stamps(w2+4)
    e("s_endpgm")
    g.lab("L_f2")
    nst[0] = nst_split
    e("s_mov_b32 exec_lo, 0x00ff00ff"); e("s_mov_b32 exec_hi, 0x00ff00ff")
    if idg:
        e(f"global_store_dwordx4 v{vPub}, {vr(D,4)}, {sr(sWS,2)}")
        id_gate("L_gh", vPub, D, None)
    else: publish(vPub, D, True)
    stamp()
    dump_stamps(W+32)
    e("s_endpgm")

    g.lab("L_stream")
    nst[0] = 1 if diag else 0
    g.reset(common_end)
    vKa = g.v(4); vKr = g.v(4)
    vV, vWo, vQr, vOw, vAp, vMp, vMw, vL, vSr, vSc, vTa, vTb, vTc, vTd, vZ, fv = [g.v() for _ in range(16)]
    mw = g.v(4); lw = mw + 1
    ml = g.v(2); op = g.v(4); op2 = g.v(4)
    s_par = 68
    qf = g.v(16); Kf = g.v(32); Vf = g.v(32); wo = g.v(8)
    D0 = g.v(4); D1 = g.v(4)
    A0 = qf; A1 = qf + 4
    s_sw, s_bw, s_kv = 13, 14, 15
    e(f"s_sub_u32 s{s_sw}, s{s_wv}, 2")
    e(f"s_lshr_b32 s{s_bw}, s{s_sw}, 2")
    e(f"s_and_b32 s{s_t0}, s{s_sw}, 3")
    e(f"s_lshl_b32 s{s_t0}, s{s_t0}, 13")
    e(f"s_lshl_b32 s{s_kv}, s{s_bw}, 25")
    e(f"s_lshl_b32 s{s_t1}, s{s_h}, 20")
    e(f"s_add_u32 s{s_kv}, s{s_kv}, s{s_t1}")
    e(f"s_add_u32 s{s_kv}, s{s_kv}, s{s_t0}")
    e(f"s_lshl_b32 s{s_t1}, s{s_j}, 15")
    e(f"s_add_u32 s{s_kv}, s{s_kv}, s{s_t1}")
    e(f"s_add_u32 s{s_kv}, s{s_kv}, {3072*256}")
    s_c2, s_cK, s_cV, s_m0b, s_so = 42, 43, 60, 61, 62
    if perm:
        e(f"s_lshl_b32 s{s_t0}, s2, 3")
        e(f"s_add_u32 s{s_t0}, s{s_t0}, s{s_sw}")
        e(f"s_mul_i32 s{s_t0}, s{s_t0}, 0x9e3779b1")
        e(f"s_lshr_b32 s{s_t0}, s{s_t0}, 29")
    else:
        e(f"s_mov_b32 s{s_t0}, 0")
    e(f"s_and_b32 s{s_c2}, s{s_t0}, 3")
    e(f"s_lshl_b32 s{s_cK}, s{s_t0}, 10")
    e(f"s_and_b32 s{s_cV}, s{s_cK}, 0x1000")
    e(f"s_lshl_b32 s{s_t1}, s{s_c2}, 8")
    e(f"s_or_b32 s{s_cV}, s{s_cV}, s{s_t1}")
    e(f"s_lshl_b32 s{s_t1}, s{s_c2}, 2")
    e(f"v_xor_b32 v{t0}, v{m}, v{kg}")
    e(f"v_xor_b32 v{t0}, s{s_t1}, v{t0}")
    e(f"v_lshl_add_u32 v{t1}, v{kg}, 8, s{s_kv}")
    for i in range(4):
        if i: e(f"v_xor_b32 v{t2}, {4*i}, v{t0}")
        e(f"v_lshl_add_u32 v{vKa+i}, v{t2 if i else t0}, 4, v{t1}")
    e(f"s_lshl_b32 s{s_m0b}, s{s_sw}, 13")
    e(f"s_add_u32 s{s_m0b}, s{s_m0b}, {L_K}")
    e(f"s_and_b32 s{s_t1}, s{s_cK}, 0xc00")
    e(f"s_or_b32 s{s_m0b}, s{s_m0b}, s{s_t1}")
    e(f"v_lshl_add_u32 v{vV}, v{kg}, {8 if 'vlin' in xp else 10}, s{s_kv}")
    if 'vlin' in xp: e(f"s_mov_b32 s{s_cV}, s{s_cK}")
    e(f"v_add_u32 v{vV}, v{vV}, v{m16}")
    e(f"s_mov_b32 s{srdA+2}, {1<<26}"); e(f"s_mov_b32 s{srdA+3}, 0x20000")
    e(f"s_mov_b32 s{srdB+2}, {1<<26}"); e(f"s_mov_b32 s{srdB+3}, 0x20000")
    e("s_waitcnt lgkmcnt(0)")
    e(f"s_mov_b32 s{srdA}, s{sK}"); e(f"s_mov_b32 s{srdA+1}, s{sK+1}")
    e(f"s_mov_b32 s{srdB}, s{sV}"); e(f"s_mov_b32 s{srdB+1}, s{sV+1}")
    e(f"s_load_dword s{s_E}, {sr(sWS,2)}, 0")
    if not early:
        e("s_barrier")
        stamp()
    def prep():
        masks_and_tags()
        e(f"s_lshl_b32 s{s_t0}, s{s_h}, 7")
        e(f"s_lshl_b32 s{s_t1}, s{s_j1}, 6")
        e(f"s_add_u32 s{s_t0}, s{s_t0}, s{s_t1}")
        e(f"s_lshr_b32 s{s_t1}, s{s_sw}, 1")
        e(f"s_lshl_b32 s{s_t1}, s{s_t1}, 4")
        e(f"s_add_u32 s{s_t0}, s{s_t0}, s{s_t1}")
        e(f"s_and_b32 s{s_t1}, s{s_sw}, 1")
        e(f"s_lshl_b32 s{s_t1}, s{s_t1}, 1")
        e(f"s_add_u32 s{s_t0}, s{s_t0}, s{s_t1}")
        e(f"s_lshl_b32 s{s_t0}, s{s_t0}, 10")
        e(f"s_lshl_b32 s{s_t1}, s{s_cb}, 8")
        e(f"s_add_u32 s{s_t0}, s{s_t0}, s{s_t1}")
        e(f"v_lshl_add_u32 v{vWo}, v{kg}, 12, v{m16}")
        e(f"v_add_u32 v{vWo}, s{s_t0}, v{vWo}")
        e(f"s_lshl_b32 s{s_t0}, s{s_bw}, 8")
        e(f"v_lshl_add_u32 v{vQr}, v{kg}, 4, s{s_t0}")
        e(f"v_mov_b32 v{vZ}, 0")
        e(f"s_lshl_b32 s{s_t0}, s{s_sw}, 13")
        e(f"s_add_u32 s{s_t0}, s{s_t0}, {L_K}")
        e(f"v_xor_b32 v{t0}, s{s_c2}, v{m}")
        e(f"v_lshl_add_u32 v{t1}, v{t0}, 8, s{s_t0}")
        e(f"v_xor_b32 v{t0}, v{t0}, v{kg}")
        for s in range(4):
            if s: e(f"v_xor_b32 v{t2}, {4*s}, v{t0}")
            e(f"v_lshl_add_u32 v{vKr+s}, v{t2 if s else t0}, 4, v{t1}")
        e(f"s_mul_i32 s{s_t0}, s{s_sw}, {OPS}")
        e(f"v_lshl_add_u32 v{vOw}, v{m}, 5, s{s_t0}")
        e(f"v_lshl_add_u32 v{vOw}, v{kg}, 4, v{vOw}")
        e(f"s_lshl_b32 s{s_t0}, s{s_sw}, 4")
        e(f"v_mov_b32 v{vMw}, s{s_t0}")
        e(f"v_and_b32 v{t0}, 7, v0")
        e(f"s_lshl_b32 s{s_t0}, s{s_h}, 13")
        e(f"s_lshl_b32 s{s_t1}, s{s_j1}, 12")
        e(f"s_add_u32 s{s_t0}, s{s_t0}, s{s_t1}")
        e(f"s_lshr_b32 s{s_t1}, s{s_sw}, 1")
        e(f"s_lshl_b32 s{s_t1}, s{s_t1}, 10")
        e(f"s_add_u32 s{s_t0}, s{s_t0}, s{s_t1}")
        e(f"s_add_u32 s{s_t0}, s{s_t0}, {ABASE}")
        e(f"v_lshl_add_u32 v{vAp}, v{t0}, {4+al}, s{s_t0}")
        e(f"v_lshrrev_b32 v{t1}, {3+al}, v{lane}")
        e(f"v_lshl_add_u32 v{vAp}, v{t1}, {7+al}, v{vAp}")
        e(f"v_bfe_u32 v{t1}, v{lane}, 3, {al}")
        e(f"v_lshl_add_u32 v{vAp}, v{t1}, 4, v{vAp}")
        e(f"v_lshrrev_b32 v{t1}, 7, v{bl}")
        e(f"v_lshl_add_u32 v{vMp}, v{t0}, 4, v{t1}")
        e(f"s_lshl_b32 s{s_t0}, s{s_h}, 7")
        e(f"s_add_u32 s{s_t0}, s{s_t0}, {MLBASE}")
        e(f"v_add_u32 v{vMp}, s{s_t0}, v{vMp}")
        e(f"s_mul_i32 s{s_t0}, s{s_sw}, {SPS}")
        e(f"v_lshl_add_u32 v{vL}, v{lane}, 4, s{s_t0}")
        e(f"v_lshl_add_u32 v{t1}, v{kg}, 3, v{t0}")
        e(f"s_lshl_b32 s{s_t0}, s{s_sw}, 9")
        e(f"v_lshl_add_u32 v{t1}, v{t1}, 4, s{s_t0}")
        e(f"v_lshl_add_u32 v{vSr}, v{bl}, 2, v{t1}")
        e(f"s_lshl_b32 s{s_t0}, s{s_cb}, 16")
        e(f"s_lshl_b32 s{s_t1}, s{s_h}, 11")
        e(f"s_add_u32 s{s_t0}, s{s_t0}, s{s_t1}")
        e(f"s_lshl_b32 s{s_t1}, s{s_j1}, 10")
        e(f"s_add_u32 s{s_t0}, s{s_t0}, s{s_t1}")
        e(f"s_add_u32 s{s_t0}, s{s_t0}, {BIN}")
        e(f"v_add_u32 v{vSc}, s{s_t0}, v{t1}")
        e(f"v_cmp_ne_u32 {sr(sM[1],2)}, 0, v{bl}")
        e(f"s_bitcmp1_b32 s{s_sw}, 0")
        e(f"s_cselect_b64 {sr(s_par,2)}, -1, 0")
        tagpair(vTc, vTd, sM[1])
        e(f"v_mov_b32 v{mw+2}, 1"); e(f"v_mov_b32 v{mw+3}, 1")
    dn = sched or [vd]*16
    first_wait = min(n for n in range(16) if n >= dn[n])
    s_nx = 63
    w3 = 2 if wol == 3 else 1 if wol == 6 else 0
    def vload(n):
        i = n - 8
        e(f"s_xor_b32 s{s_so}, s{s_cV}, {(i//4)*4096+(i%4)*256}")
        e(f"buffer_load_dwordx4 {vr(Vf+i*4,4)}, v{vV}, {sr(srdB,4)}, s{s_so} offen{fV}")
    def woload():
        e(f"global_load_dwordx4 {vr(wo,4)}, v{vWo}, {sr(sWO,2)}{fW}")
        e(f"global_load_dwordx4 {vr(wo+4,4)}, v{vWo}, {sr(sWO,2)} offset:1024{fW}")
    for n in range(16):
        vd = dn[n]
        if early and n == early:
            e("s_barrier")
            stamp()
        if n == first_wait: prep()
        if n < 8:
            e(f"s_xor_b32 m0, s{s_m0b}, {n*1024}")
            e(f"s_xor_b32 s{s_so}, s{s_cK}, {n*1024}")
            if n >= vd: e(f"s_waitcnt vmcnt({vd-1})")
            e(f"buffer_load_dwordx4 v{vKa+n%4}, {sr(srdA,4)}, s{s_so} offen{fK} lds")
            if n == 7 and wol in (3, 6):
                e(f"s_waitcnt vmcnt({vd-1})")
                e(f"global_load_dwordx4 {vr(wo,4)}, v{vWo}, {sr(sWO,2)}{fW}")
            if n == 7 and wol == 3:
                e(f"s_waitcnt vmcnt({vd-1})")
                e(f"global_load_dwordx4 {vr(wo+4,4)}, v{vWo}, {sr(sWO,2)} offset:1024{fW}")
        else:
            e(f"s_waitcnt vmcnt({vd-1})")
            vload(n)
            if n == 8: stamp()
            if burst and n < 15 and n + w3 - (vd - 1) >= 8 - 1:
                e(f"ds_read_b32 v{fv}, v{vZ} offset:{L_FL}")
                e("s_waitcnt lgkmcnt(0)")
                e(f"v_cmp_ne_u32 vcc, 1, v{fv}")
                e(f"s_cbranch_vccz L_c{n}")
    e(f"s_mov_b32 s{s_nx}, 16")
    e(f"s_waitcnt vmcnt({8+w3})")
    e("s_branch L_qk")
    nxs = set()
    if burst:
        for n in range(8, 15):
            if not (n + w3 - (dn[n] - 1) >= 7): continue
            g.lab(f"L_c{n}")
            last = min(15, n + top)
            for k in range(n + 1, last + 1): vload(k)
            e(f"s_mov_b32 s{s_nx}, {last+1}")
            nxs.add(last + 1)
            e(f"s_waitcnt vmcnt({last-7+w3})")
            if n < 14: e("s_branch L_qk")
    g.lab("L_qk")
    for u in range(2):
        for s in range(4): e(f"ds_read_b128 {vr(Kf+(u*4+s)*4,4)}, v{vKr+s} offset:{u*4096}")
    stamp()
    e(f"s_mov_b32 s{s_cnt}, {spin*16}")
    g.lab("L_wq")
    e(f"ds_read_b32 v{fv}, v{vZ} offset:{L_FL}")
    for s in range(4): e(f"ds_read_b128 {vr(qf+4*s,4)}, v{vQr} offset:{L_Q+64*s}")
    e("s_waitcnt lgkmcnt(0)")
    e(f"v_cmp_ne_u32 vcc, 1, v{fv}")
    e("s_cbranch_vccz L_wq_ok")
    e("s_sleep 2")
    e(f"s_sub_u32 s{s_cnt}, s{s_cnt}, 1")
    e(f"s_cmp_lg_u32 s{s_cnt}, 0")
    e("s_cbranch_scc1 L_wq")
    g.lab("L_wq_ok")
    stamp()
    for s in range(4):
        mfma(D0, Kf+4*s, qf+4*s, None if s == 0 else D0)
        mfma(D1, Kf+16+4*s, qf+4*s, None if s == 0 else D1)
    e("s_nop 7")
    assert D1 == D0 + 4
    S = D0
    for i in range(0, 8, 2): rbf2(S+i, S+i+1, t0)
    for i in range(8): e(f"v_mul_f32 v{S+i}, s{s_scale}, v{S+i}")
    for i in range(0, 8, 2): rbf2(S+i, S+i+1, t0)
    e(f"v_max3_f32 v{mw}, v{S}, v{S+1}, v{S+2}")
    e(f"v_max3_f32 v{mw}, v{mw}, v{S+3}, v{S+4}")
    e(f"v_max3_f32 v{mw}, v{mw}, v{S+5}, v{S+6}")
    e(f"v_max_f32 v{mw}, v{mw}, v{S+7}")
    redgrp("v_max_f32", mw, t0)
    for i in range(8): e(f"v_sub_f32 v{S+i}, v{S+i}, v{mw}")
    for i in range(8): e(f"v_mul_f32 v{S+i}, s{s_l2e}, v{S+i}")
    for i in range(8): e(f"v_exp_f32 v{S+i}, v{S+i}")
    e(f"v_add_f32 v{lw}, v{S}, v{S+1}")
    for i in range(2, 8): e(f"v_add_f32 v{lw}, v{lw}, v{S+i}")
    redgrp("v_add_f32", lw, t0)
    e("s_mov_b64 exec, 1")
    e(f"ds_write_b128 v{vMw}, {vr(mw,4)} offset:{L_ML}")
    e("s_mov_b64 exec, -1")
    lo = min(nxs | {16})
    for k in sorted(nxs | {16}, reverse=True):
        if k > lo:
            e(f"s_cmp_eq_u32 s{s_nx}, {k}")
            e(f"s_cbranch_scc1 L_u{k}")
    for k in range(lo, 16):
        if k > lo: g.lab(f"L_u{k}")
        if rd: e(f"s_waitcnt vmcnt({rd-1})")
        vload(k)
    if lo < 16: g.lab("L_u16")
    if wol == 0: woload()
    for i in range(8): afrag(Kf+4*i, S+i)
    e(f"s_mov_b32 s{s_cnt}, {spin}")
    stamp()
    nwo = 2 if wol == 0 else 0
    for i in range(8):
        if wol >= 10 and i == wol - 10:
            woload(); nwo = 2
        e(f"s_waitcnt vmcnt({7-i+nwo})")
        mfma(D0, Kf+4*i, Vf+4*i, None if i == 0 else D0)
    stamp()
    if wol in (5, 6): e("s_nop 0")
    else: e(f"global_load_dwordx2 {vr(ml,2)}, v{vMp}, {sr(sWS,2)} sc1")
    if wol == 1:
        woload(); e("s_nop 3")
    else:
        e("s_nop 5")
    e("s_mov_b32 exec_hi, 0")
    e(f"ds_write_b128 v{vOw}, {vr(D0,4)} offset:{L_OP}")
    e("s_mov_b32 exec_hi, -1")
    e("s_waitcnt lgkmcnt(0)")
    e("s_barrier")
    if wol == 2: woload()
    if wol in (5, 6):
        e(f"global_load_dwordx2 {vr(ml,2)}, v{vMp}, {sr(sWS,2)} sc1")
        e("s_barrier")
        if wol == 5: woload()
        else: e(f"global_load_dwordx4 {vr(wo+4,4)}, v{vWo}, {sr(sWO,2)} offset:1024{fW}")
    if mlop and not b4b: e(f"global_load_dwordx4 {vr(op,4)}, v{vAp}, {sr(sWS,2)} sc1")
    e(f"s_waitcnt vmcnt({(2 if wol in (1, 2, 5) else 1 if wol == 6 else 0) + (1 if mlop and not b4b else 0)})")
    e("s_branch L_pml_c")
    g.lab("L_pml")
    e(f"global_load_dwordx2 {vr(ml,2)}, v{vMp}, {sr(sWS,2)} sc1")
    e("s_waitcnt vmcnt(0)")
    g.lab("L_pml_c")
    e(f"v_xor_b32 v{ml}, v{ml}, v{vTc}")
    e(f"v_xor_b32 v{ml+1}, v{ml+1}, v{vTd}")
    e(f"v_or_b32 v{t0}, v{ml}, v{ml+1}")
    poll_tail(t0, "L_pml", slp)
    stamp()
    e(f"v_mov_b32 v{t0}, v{ml}")
    red8("v_max_f32", [t0])
    e(f"v_sub_f32 v{t0}, v{ml}, v{t0}")
    e(f"v_mul_f32 v{t0}, s{s_l2e}, v{t0}")
    e(f"v_exp_f32 v{t0}, v{t0}")
    if b4b: e("s_nop 0")
    else: e(f"global_load_dwordx4 {vr(op2 if mlop else op,4)}, v{vAp}, {sr(sWS,2)} sc1")
    e(f"v_mul_f32 v{t1}, v{t0}, v{ml+1}")
    red8("v_add_f32", [t1])
    e(f"v_rcp_f32 v{t1}, v{t1}")
    e(f"s_mov_b32 s{s_cnt}, {spin}")
    e(f"v_mul_f32 v{t3}, v{t0}, v{t1}")
    if b4b:
        if wol not in (5, 6): e("s_barrier")
        if wol == 4: woload()
        e(f"global_load_dwordx4 {vr(op,4)}, v{vAp}, {sr(sWS,2)} sc1")
        if mlop:
            e("s_sleep 1")
            e(f"global_load_dwordx4 {vr(op2,4)}, v{vAp}, {sr(sWS,2)} sc1")
    def opchk(z):
        for r in range(4): e(f"v_xor_b32 v{z+r}, s{sT[r]}, v{z+r}")
        e(f"v_or_b32 v{t0}, v{z}, v{z+1}")
        e(f"v_or3_b32 v{t0}, v{t0}, v{z+2}, v{z+3}")
    if not mlop:
        e("s_branch L_pa2")
        g.lab("L_pa")
        e(f"global_load_dwordx4 {vr(op,4)}, v{vAp}, {sr(sWS,2)} sc1")
        g.lab("L_pa2")
        e("s_waitcnt vmcnt(0)")
        opchk(op)
        poll_tail(t0, "L_pa", slp)
        stamp()
        e(f"v_cndmask_b32 v{op}, v{op}, v{op+2}, {sr(s_par,2)}")
        e(f"v_cndmask_b32 v{op+1}, v{op+1}, v{op+3}, {sr(s_par,2)}")
    else:
        g.lab("L_pa")
        for z, o in ((op, op2), (op2, op)):
            e("s_waitcnt vmcnt(1)")
            opchk(z)
            e(f"v_cndmask_b32 v{ml}, v{z}, v{z+2}, {sr(s_par,2)}")
            e(f"v_cndmask_b32 v{ml+1}, v{z+1}, v{z+3}, {sr(s_par,2)}")
            e(f"v_and_b32 v{t0}, 0xff, v{t0}")
            e(f"v_cmp_ne_u32 vcc, 0, v{t0}")
            e("s_cbranch_vccz L_pa_ok")
            if slp: e(f"s_sleep {slp}")
            e(f"global_load_dwordx4 {vr(z,4)}, v{vAp}, {sr(sWS,2)} sc1")
        e(f"s_sub_u32 s{s_cnt}, s{s_cnt}, 1")
        e(f"s_cmp_lg_u32 s{s_cnt}, 0")
        e("s_cbranch_scc1 L_pa")
        g.lab("L_pa_ok")
        stamp()
        op = ml
    e(f"v_mul_f32 v{op}, v{op}, v{t3}")
    e(f"v_mul_f32 v{op+1}, v{op+1}, v{t3}")
    red8("v_add_f32", [op, op+1])
    afrag(A0, op); afrag(A1, op+1)
    e("s_nop 0")
    mfma(D0, A0, wo, None)
    mfma(D0, A1, wo+4, D0)
    e("s_nop 7")
    e(f"ds_write_b128 v{vL}, {vr(D0,4)} offset:{L_SP}")
    e("s_waitcnt lgkmcnt(0)")
    e("s_barrier")
    stamp()
    e(f"s_cmp_ge_u32 s{s_sw}, 2")
    e("s_cbranch_scc1 L_sdone")
    R = Vf
    for i in range(4): e(f"ds_read_b128 {vr(R+4*i,4)}, v{vSr} offset:{L_SP+1024*i}")
    e("s_waitcnt lgkmcnt(2)")
    for r in range(4): e(f"v_add_f32 v{R+r}, v{R+r}, v{R+4+r}")
    e("s_waitcnt lgkmcnt(0)")
    for r in range(4): e(f"v_add_f32 v{R+8+r}, v{R+8+r}, v{R+12+r}")
    for r in range(4): e(f"v_add_f32 v{R+r}, v{R+r}, v{R+8+r}")
    for r in range(4): dpp("v_add_f32", R+r, R+r, R+r, "row_ror:8")
    tag4(R)
    e("s_mov_b32 exec_lo, 0x00ff00ff"); e("s_mov_b32 exec_hi, 0x00ff00ff")
    e(f"global_store_dwordx4 v{vSc}, {vr(R,4)}, {sr(sWS,2)} sc1")
    g.lab("L_sdone")
    if b6: e("s_barrier")
    stamp()
    dump_stamps(Kf)
    g.lab("L_end")
    e("s_endpgm")

    if "nows" in xp or "noaux" in xp:
        i0 = g.L.index("L_stream:")
        keep = []
        for n, l in enumerate(g.L):
            drop = False
            if n < i0:
                isdump = "offset:" in l and "global_store_dwordx4" in l and "sc1" not in l
                if ("s[40:41]" in l and ("global_" in l) and not isdump): drop = True
                if "glc" in l: drop = True
                if "noaux" in xp and ("buffer_load" in l or "global_load" in l): drop = True
            if not drop: keep.append(l)
        g.L = keep
    nv = (g.maxv + 7) // 8 * 8
    ldsb = L_K + 65536 if kdma else L_K
    hdr = open(os.path.join(os.path.dirname(os.path.abspath(__file__)), "..", "cdna_kernels", NAME + ".s.ref")).read().split("\n")
    top = [l for l in hdr if l.startswith(";") and "@launch" not in l and "Override" not in l and "grid=ceil" not in l]
    out = top + [f"; @launch grid=(256,1,1) block=({NW*64},1,1) lds={ldsb}",
        '.amdgcn_target "amdgcn-amd-amdhsa--gfx950"', ".text", f".globl {NAME}_kernel", ".p2align 8",
        f".type {NAME}_kernel,@function", f"{NAME}_kernel:"] + g.L + [
        '.section .rodata,"a"', ".p2align 6", f".amdhsa_kernel {NAME}_kernel",
        f"  .amdhsa_next_free_vgpr {nv}", "  .amdhsa_next_free_sgpr 102", f"  .amdhsa_accum_offset {nv}",
        "  .amdhsa_group_segment_fixed_size 0", "  .amdhsa_kernarg_size 104", "  .amdhsa_user_sgpr_count 2",
        "  .amdhsa_user_sgpr_kernarg_segment_ptr 1", "  .amdhsa_system_sgpr_workgroup_id_x 1", ".end_amdhsa_kernel", ""]
    return "\n".join(out)

if __name__ == "__main__":
    import argparse
    ap = argparse.ArgumentParser()
    ap.add_argument("-o", default=None)
    ap.add_argument("--diag", action="store_true")
    ap.add_argument("--opt", default="")
    a = ap.parse_args()
    kw = eval("dict(" + a.opt + ")")
    txt = gen(diag=a.diag, **kw)
    path = a.o or os.path.join(os.path.dirname(os.path.abspath(__file__)), "..", "cdna_kernels", NAME + ".s")
    open(path, "w").write(txt)
    print("wrote", path, len(txt.split("\n")), "lines", [l for l in txt.split("\n") if "next_free_vgpr" in l])
```

```python
import sys, os
NAME = "recurrent_scan__sliding_block_cached__dense_activation_squared_relu__decode"

class G:
    def __init__(self):
        self.L = []; self.nv = 0; self.maxv = 0
    def e(self, s): self.L.append("    " + s)
    def lab(self, s): self.L.append(s + ":")
    def reset(self, n): self.nv = n
    def v(self, n=1, al=1):
        if n >= 4: al = max(al, 4) if n % 4 == 0 else max(al, 2)
        elif n >= 2: al = max(al, 2)
        self.nv = (self.nv + al - 1) // al * al
        r = self.nv; self.nv += n
        self.maxv = max(self.maxv, self.nv)
        return r

def vr(b, n): return f"v[{b}:{b+n-1}]"
def sr(b, n): return f"s[{b}:{b+n-1}]"

QBASE = 0x1000
HBASE = QBASE + 0x40000
ABASE = HBASE + 0x20000
MLBASE = ABASE + 0x40000
IDBASE = MLBASE + 0x1000
FIN = IDBASE + 0x1000
BIN = FIN + 0x40000
DIAG = 0x400000
L_Q = 0; L_FL = 512; L_ML = 640; L_OP = 1024; OPS = 544; L_SP = 5632; SPS = 1024; L_K = 16384
NW = 10

SCALE = 0x3DB504F3
LOG2E = 0x3FB8AA3B
EPS = 0x3727C5AC

def gen(diag=False, fK="nt", fV="nt", fW="nt", kdma=True, bar0=True, fast=True, prio=True, pf=True, gate=True, vd=4, slp=1, perm=True, fmap=True, sched=None, bp=1, xp='', early=0, wol=1, burst=True, tlb=False, mlop=True, top=2, rd=0, b4b=True, b6=True, al=1, gw=False, idg=True, flate=0, bsl=4, amp=None, spin=20000):
    g = G(); e = g.e
    fl = lambda f: (" " + f) if f else ""
    fK, fV, fW = fl(fK), fl(fV), fl(fW)
    sX, sK, sV, sWQ, sWO, sW1, sB1, sW2, sB2, sOUT, sWS = 16, 18, 20, 22, 24, 28, 30, 32, 34, 36, 40
    s_wv, s_h, s_j, s_t0, s_t1, s_E, s_cnt = 3, 4, 5, 6, 7, 8, 9
    s_j1, s_cb, s_wgi = 10, 11, 12
    s_g = 43
    sT = [44, 45, 46, 47]
    s_hi, s_scale, s_l2e, s_fast = 48, 49, 50, 51
    srdA, srdB, srdC = 52, 56, 60
    sM = [64, 66, 68, 70]
    sID = 64
    s_T, s_idw, s_ido = 26, 38, 27
    sG = 100
    ST0 = 72
    nst = [0]
    def stamp():
        if diag:
            e(f"s_memrealtime {sr(ST0+2*nst[0],2)}")
            nst[0] += 1
            assert nst[0] <= 14
    ndump = [0]
    def dump_stamps(vt):
        if not diag: return
        if amp:
            role = ndump[0]; ndump[0] += 1
            if role != amp[0]: return
            e("s_waitcnt lgkmcnt(0)")
            e(f"s_cmp_eq_u32 s{ST0+2*amp[1]}, 0")
            e("s_cbranch_scc1 L_ampd")
            e(f"s_sub_u32 s{s_t0}, s{ST0+2*amp[1]}, s{ST0}")
            e(f"s_lshl_b32 s{s_t0}, s{s_t0}, 3")
            e(f"s_add_u32 s{s_t0}, s{s_t0}, s{ST0}")
            e(f"s_add_u32 s{s_t0}, s{s_t0}, 2000")
            g.lab("L_amp")
            e(f"s_memrealtime {sr(ST0+2,2)}")
            e("s_waitcnt lgkmcnt(0)")
            e(f"s_sub_u32 s{s_t1}, s{ST0+2}, s{s_t0}")
            e(f"s_cmp_lt_i32 s{s_t1}, 0")
            e("s_cbranch_scc1 L_amp")
            g.lab("L_ampd")
            return
        e("s_mov_b64 exec, -1")
        e("s_waitcnt vmcnt(0) lgkmcnt(0)")
        e(f"s_getreg_b32 s{s_t0}, hwreg(HW_REG_XCC_ID)")
        e(f"s_getreg_b32 s{s_t1}, hwreg(HW_REG_HW_ID)")
        for i in range(14):
            src = f"s{ST0+2*i}" if i < nst[0] else "0"
            e(f"v_mov_b32 v{vt+i}, {src}")
        e(f"v_mov_b32 v{vt+14}, s{s_t0}")
        e(f"v_mov_b32 v{vt+15}, s{s_t1}")
        e(f"s_mul_i32 s{s_t0}, s2, {NW}")
        e(f"s_add_u32 s{s_t0}, s{s_t0}, s{s_wv}")
        e(f"s_lshl_b32 s{s_t0}, s{s_t0}, 6")
        e(f"s_add_u32 s{s_t0}, s{s_t0}, {DIAG}")
        e(f"v_mov_b32 v{vt+16}, s{s_t0}")
        e("s_mov_b64 exec, 1")
        for i in range(4):
            e(f"global_store_dwordx4 v{vt+16}, {vr(vt+4*i,4)}, {sr(sWS,2)} offset:{16*i}")
    def dpp(op, d, a, b, ctl):
        e(f"{op}_dpp v{d}, v{a}, v{b} {ctl} row_mask:0xf bank_mask:0xf")
    X1, X2, HM, RM = "quad_perm:[1,0,3,2]", "quad_perm:[2,3,0,1]", "row_half_mirror", "row_mirror"
    def red8(op, regs):
        for ctl in (X1, X2, HM):
            pad = max(0, 2 - (len(regs) - 1))
            if pad: e(f"s_nop {pad-1}")
            for r in regs: dpp(op, r, r, r, ctl)
    def redgrp(op, r, tmp):
        e(f"v_mov_b32 v{tmp}, v{r}"); e("s_nop 1")
        e(f"v_permlane16_swap_b32 v{r}, v{tmp}")
        e(f"{op} v{r}, v{r}, v{tmp}")
        e(f"v_mov_b32 v{tmp}, v{r}"); e("s_nop 1")
        e(f"v_permlane32_swap_b32 v{r}, v{tmp}")
        e(f"{op} v{r}, v{r}, v{tmp}")
    def rbf(d, a):
        e(f"v_cvt_pk_bf16_f32 v{d}, v{a}, v{a}")
        e(f"v_and_b32 v{d}, s{s_hi}, v{d}")
    def rbf2(a, b, tmp):
        e(f"v_cvt_pk_bf16_f32 v{tmp}, v{a}, v{b}")
        e(f"v_lshlrev_b32 v{a}, 16, v{tmp}")
        e(f"v_and_b32 v{b}, s{s_hi}, v{tmp}")
    def mfma(d, a, b, c):
        cc = "0" if c is None else vr(c, 4)
        e(f"v_mfma_f32_16x16x32_bf16 {vr(d,4)}, {vr(a,4)}, {vr(b,4)}, {cc}")
    def srd(d, p, n):
        e(f"s_mov_b32 s{d}, s{p}"); e(f"s_mov_b32 s{d+1}, s{p+1}")
        e(f"s_mov_b32 s{d+2}, {n}"); e(f"s_mov_b32 s{d+3}, 0x20000")

    g.reset(1)
    lane, m, kg = g.v(), g.v(), g.v()
    msk = g.v(4)
    vFF = g.v()
    t0, t1, t2, t3 = g.v(), g.v(), g.v(), g.v()
    bl, m16 = g.v(), g.v()
    common_end = g.nv
    e("s_cmp_ge_u32 s2, 256")
    e("s_cbranch_scc1 L_end")
    e(f"s_load_dwordx16 {sr(16,16)}, s[0:1], 0")
    e(f"s_load_dwordx8 {sr(32,8)}, s[0:1], 64")
    e(f"s_load_dwordx2 {sr(sWS,2)}, s[0:1], 96")
    stamp()
    if diag:
        for i in range(1, 14): e(f"s_mov_b32 s{ST0+2*i}, 0")
    e(f"v_lshrrev_b32 v{t0}, 6, v0")
    e(f"v_and_b32 v{lane}, 63, v0")
    e(f"v_readfirstlane_b32 s{s_wv}, v{t0}")
    e(f"v_and_b32 v{m}, 15, v0")
    e(f"v_bfe_u32 v{kg}, v0, 4, 2")
    e(f"s_lshr_b32 s{s_h}, s2, 6")
    e(f"s_lshl_b32 s{s_h}, s{s_h}, 3")
    e(f"s_and_b32 s{s_t0}, s2, 7")
    e(f"s_add_u32 s{s_h}, s{s_h}, s{s_t0}")
    e(f"s_bfe_u32 s{s_j}, s2, 0x30003")
    e(f"s_and_b32 s{s_j1}, s{s_j}, 1")
    e(f"s_lshr_b32 s{s_cb}, s{s_j}, 1")
    e(f"s_lshl_b32 s{s_wgi}, s{s_h}, 3")
    e(f"s_add_u32 s{s_wgi}, s{s_wgi}, s{s_j}")
    if fmap:
        e(f"s_lshl_b32 s{s_g}, s{s_t0}, 2")
        e(f"s_lshr_b32 s{s_t0}, s2, 6")
        e(f"s_add_u32 s{s_g}, s{s_g}, s{s_t0}")
    else:
        e(f"s_mov_b32 s{s_g}, s{s_h}")
    if "noffn" in xp: e(f"s_mov_b32 s{s_g}, 31")
    e(f"s_mov_b32 s{s_hi}, 0xffff0000")
    e(f"s_mov_b32 s{s_scale}, {SCALE:#x}")
    e(f"s_mov_b32 s{s_l2e}, {LOG2E:#x}")
    e(f"v_bfe_u32 v{bl}, v0, 3, 1")
    e(f"v_lshlrev_b32 v{bl}, 10, v{bl}")
    e(f"v_lshlrev_b32 v{m16}, 4, v{m}")
    e(f"s_cmp_ge_u32 s{s_wv}, 2")
    e("s_cbranch_scc1 L_stream")

    def masks_and_tags(tags=True):
        e(f"v_bfe_u32 v{t0}, v{m}, 1, 2")
        e(f"v_and_b32 v{t1}, 1, v{m}")
        e(f"v_lshlrev_b32 v{t1}, 4, v{t1}")
        e(f"v_mov_b32 v{t2}, 0xffff")
        e(f"v_lshlrev_b32 v{t1}, v{t1}, v{t2}")
        for i in range(4): e(f"v_cmp_eq_u32 {sr(sM[i],2)}, {i}, v{t0}")
        e(f"v_mov_b32 v{vFF}, 0xffffff00")
        for i in range(4): e(f"v_cndmask_b32 v{msk+i}, 0, v{t1}, {sr(sM[i],2)}")
        if tags: do_tags()
    def do_tags():
        e("s_waitcnt lgkmcnt(0)")
        e(f"s_mul_i32 s{s_t0}, s{s_E}, 0x9e3779b1")
        e(f"s_add_u32 s{s_t0}, s{s_t0}, 0x7f4a7c15")
        e(f"s_add_u32 s{sT[0]}, s{s_E}, 1")
        e(f"s_and_b32 s{sT[0]}, s{sT[0]}, 0xff")
        e(f"s_bfe_u32 s{sT[1]}, s{s_t0}, 0x80008")
        e(f"s_bfe_u32 s{sT[2]}, s{s_t0}, 0x80010")
        e(f"s_bfe_u32 s{sT[3]}, s{s_t0}, 0x80018")
        e(f"s_and_b32 s{s_T}, s{s_t0}, 0xffffff00")
        e(f"s_or_b32 s{s_T}, s{s_T}, s{sT[0]}")
        e(f"s_getreg_b32 s{s_t1}, hwreg(HW_REG_XCC_ID, 0, 4)")
        e(f"s_and_b32 s{s_idw}, s{s_T}, -16")
        e(f"s_or_b32 s{s_idw}, s{s_idw}, s{s_t1}")
        e(f"s_mov_b32 s{s_idw+1}, s{s_idw}")
        e(f"s_lshl_b32 s{s_ido}, s{s_h}, 7")
        e(f"s_add_u32 s{s_ido}, s{s_ido}, {IDBASE}")
    def id_issue():
        e(f"s_load_dwordx8 {sr(sID,8)}, {sr(sWS,2)}, s{s_ido} glc")
    def id_check():
        for i in range(4): e(f"s_xor_b64 {sr(sID+2*i,2)}, {sr(sID+2*i,2)}, {sr(s_idw,2)}")
        e(f"s_or_b64 {sr(sID,2)}, {sr(sID,2)}, {sr(sID+2,2)}")
        e(f"s_or_b64 {sr(sID+4,2)}, {sr(sID+4,2)}, {sr(sID+6,2)}")
        e(f"s_or_b64 {sr(sID,2)}, {sr(sID,2)}, {sr(sID+4,2)}")
        e(f"s_cselect_b32 s{s_fast}, 0, 1")
    def id_gate(lab, vaddr, d, mask):
        e(f"s_movk_i32 s{s_t1}, 400")
        g.lab(lab)
        id_issue()
        e(f"s_sub_u32 s{s_t1}, s{s_t1}, 1")
        e("s_waitcnt lgkmcnt(0)")
        e(f"s_cbranch_scc1 {lab}_s")
        id_check()
        e(f"s_or_b32 s{sID}, s{sID}, s{sID+1}")
        e(f"s_lshr_b32 s{sID}, s{sID}, 4")
        e(f"s_cbranch_scc1 {lab}")
        e(f"s_cmp_eq_u32 s{s_fast}, 1")
        e(f"s_cbranch_scc1 {lab}_f")
        g.lab(f"{lab}_s")
        e(f"s_mov_b32 s{s_fast}, 0")
        if mask: e(f"s_mov_b32 exec_lo, {mask}"); e(f"s_mov_b32 exec_hi, {mask}")
        e(f"global_store_dwordx4 v{vaddr}, {vr(d,4)}, {sr(sWS,2)} sc1")
        if mask: e("s_mov_b64 exec, -1")
        g.lab(f"{lab}_f")
    def smem_gate(lab, base, shift, stride, off, tagi):
        if not gate: return
        e(f"s_lshl_b32 s{s_t0}, s{s_h}, {shift}")
        e(f"s_add_u32 s{s_t0}, s{s_t0}, {base+off}")
        e(f"s_add_u32 s{sG}, s{sWS}, s{s_t0}")
        e(f"s_addc_u32 s{sG+1}, s{sWS+1}, 0")
        e(f"s_movk_i32 s{s_t1}, 200")
        if gw: e(f"s_waitcnt vmcnt({gw})")
        g.lab(lab)
        for p in range(8): e(f"s_load_dword s{sID+p}, {sr(sG,2)}, {p*stride} glc")
        e(f"s_sub_u32 s{s_t1}, s{s_t1}, 1")
        e(f"s_cbranch_scc1 {lab}_to")
        e("s_waitcnt lgkmcnt(0)")
        for p in range(8): e(f"s_xor_b32 s{sID+p}, s{sID+p}, s{sT[tagi]}")
        e(f"s_or_b64 {sr(sID,2)}, {sr(sID,2)}, {sr(sID+2,2)}")
        e(f"s_or_b64 {sr(sID+4,2)}, {sr(sID+4,2)}, {sr(sID+6,2)}")
        e(f"s_or_b64 {sr(sID,2)}, {sr(sID,2)}, {sr(sID+4,2)}")
        e(f"s_or_b32 s{sID}, s{sID}, s{sID+1}")
        e(f"s_and_b32 s{sID}, s{sID}, 0xff")
        e(f"s_cbranch_scc1 {lab}")
        g.lab(f"{lab}_to")
        e("s_waitcnt lgkmcnt(0)")
    def afrag(dst, val):
        e(f"v_cvt_pk_bf16_f32 v{dst+3}, v{val}, v{val}")
        for i in range(4): e(f"v_and_b32 v{dst+i}, v{msk+i}, v{dst+3}")
    def tag4(d):
        for i in range(4): e(f"v_and_or_b32 v{d+i}, v{d+i}, v{vFF}, s{sT[i]}")
    def poll_tail(acc, lab, sleep=0):
        e(f"v_and_b32 v{acc}, 0xff, v{acc}")
        e(f"v_cmp_ne_u32 vcc, 0, v{acc}")
        e(f"s_cbranch_vccz {lab}_ok")
        if sleep: e(f"s_sleep {sleep}")
        e(f"s_sub_u32 s{s_cnt}, s{s_cnt}, 1")
        e(f"s_cmp_lg_u32 s{s_cnt}, 0")
        e(f"s_cbranch_scc1 {lab}")
        g.lab(f"{lab}_ok")
    npub = [0]
    def publish(vaddr, d, slow=False, n4=4):
        if slow or not fast:
            e(f"global_store_dwordx{n4} v{vaddr}, {vr(d,n4)}, {sr(sWS,2)} sc1"); return
        n = npub[0]; npub[0] += 1
        e(f"s_cmp_eq_u32 s{s_fast}, 0")
        e(f"s_cbranch_scc1 L_ps{n}")
        e(f"global_store_dwordx{n4} v{vaddr}, {vr(d,n4)}, {sr(sWS,2)}")
        e(f"s_branch L_pd{n}")
        g.lab(f"L_ps{n}")
        e(f"global_store_dwordx{n4} v{vaddr}, {vr(d,n4)}, {sr(sWS,2)} sc1")
        g.lab(f"L_pd{n}")
    def sum_n(base, n):
        step = 1
        while step < n:
            for i in range(0, n, 2*step):
                for r in range(4):
                    e(f"v_add_f32 v{base+4*i+r}, v{base+4*i+r}, v{base+4*(i+step)+r}")
            step *= 2
    def tagpair(da, db, cond):
        e(f"v_mov_b32 v{t0}, s{sT[0]}"); e(f"v_mov_b32 v{t1}, s{sT[1]}")
        e(f"v_mov_b32 v{t2}, s{sT[2]}"); e(f"v_mov_b32 v{t3}, s{sT[3]}")
        e(f"v_cndmask_b32 v{da}, v{t0}, v{t2}, {sr(cond,2)}")
        e(f"v_cndmask_b32 v{db}, v{t1}, v{t3}, {sr(cond,2)}")

    vX, vXr, vW, vPub, vl16, c2, vPf = [g.v() for _ in range(7)]
    xd = g.v(8); xl = g.v(8); xr = g.v(8)
    W = g.v(64); AF = g.v(8); D = g.v(4)
    aux_end = g.nv
    s_str, s_off, s_lim = 13, 14, 15
    if prio: e("s_setprio 3")
    if pf:
        e(f"s_getpc_b64 {sr(sG,2)}")
        g.lab("L_pc")
        e(f"s_lshr_b32 s{s_t0}, s2, 3")
        e(f"s_lshl_b32 s{s_t0}, s{s_t0}, 9")
        e(f"s_lshl_b32 s{s_t1}, s{s_wv}, 8")
        e(f"s_add_u32 s{s_t0}, s{s_t0}, s{s_t1}")
        e(f"v_lshl_add_u32 v{vPf}, v{lane}, 7, s{s_t0}")
        e(f"v_min_u32 v{vPf}, L_end-L_pc, v{vPf}")
        e("s_mov_b64 exec, 3")
        e(f"global_load_dword v{vPf}, v{vPf}, {sr(sG,2)}")
        e("s_mov_b64 exec, -1")
    e(f"v_lshlrev_b32 v{t0}, 2, v{lane}")
    e(f"v_mov_b32 v{t1}, 0")
    e(f"ds_write_b32 v{t0}, v{t1} offset:{L_FL}")
    e(f"s_movk_i32 s{s_str}, 2752")
    e(f"s_movk_i32 s{s_t1}, 96")
    e(f"s_cmp_eq_u32 s{s_wv}, 0")
    e(f"s_cmovk_i32 s{s_str}, 8192")
    e(f"s_cmovk_i32 s{s_t1}, 256")
    e(f"s_cselect_b32 s{s_lim}, s{s_h}, s{s_g}")
    e(f"s_lshl_b32 s{srdA+2}, s{s_str}, 9")
    e(f"s_mul_i32 s{s_t1}, s{s_t1}, s{s_lim}")
    e(f"s_mul_i32 s{s_lim}, s{s_g}, 6")
    e(f"s_sub_i32 s{s_lim}, 172, s{s_lim}")
    e(f"s_min_i32 s{s_lim}, s{s_lim}, 6")
    e(f"s_cmp_eq_u32 s{s_wv}, 0")
    e(f"s_cselect_b32 s{s_lim}, 16, s{s_lim}")
    e(f"s_mov_b32 s{srdA+3}, 0x20000")
    e(f"v_and_b32 v{t0}, 7, v0")
    e(f"v_lshl_add_u32 v{vX}, v{t0}, 5, v{bl}")
    e(f"v_lshl_add_u32 v{vX}, v{kg}, 8, v{vX}")
    e(f"s_lshl_b32 s{s_t0}, s{s_j}, 6")
    e(f"v_lshl_add_u32 v{t1}, v{kg}, 4, s{s_t0}")
    e(f"v_lshl_add_u32 v{vXr}, v{t1}, 1, v{bl}")
    e(f"v_mul_u32_u24 v{vW}, s{s_str}, v{t1}")
    e(f"v_add3_u32 v{vW}, v{vW}, v{m16}, s{s_t1}")
    e(f"v_cmp_gt_i32 vcc, s{s_lim}, v{m}")
    e(f"v_bfrev_b32 v{t2}, 1")
    e(f"s_mov_b32 s{s_off}, 0")
    e(f"s_cmp_eq_u32 s{s_wv}, 0")
    e(f"v_cndmask_b32 v{vW}, v{t2}, v{vW}, vcc")
    e("s_waitcnt lgkmcnt(0)")
    e(f"s_cselect_b32 s{srdA}, s{sWQ}, s{sW1}")
    e(f"s_cselect_b32 s{srdA+1}, s{sWQ+1}, s{sW1+1}")
    e(f"s_load_dword s{s_E}, {sr(sWS,2)}, 0")
    stamp()
    e(f"global_load_dwordx4 {vr(xd,4)}, v{vX}, {sr(sX,2)}")
    e(f"global_load_dwordx4 {vr(xd+4,4)}, v{vX}, {sr(sX,2)} offset:16")
    e(f"global_load_dwordx4 {vr(xr,4)}, v{vXr}, {sr(sX,2)}")
    e(f"global_load_dwordx4 {vr(xr+4,4)}, v{vXr}, {sr(sX,2)} offset:16")
    for t in range(16):
        e(f"buffer_load_dwordx4 {vr(W+4*t,4)}, v{vW}, {sr(srdA,4)}, s{s_off} offen{fW}")
        if t < 15: e(f"s_add_u32 s{s_off}, s{s_off}, s{s_str}")
    e("s_barrier")
    stamp()
    e(f"v_lshlrev_b32 v{vl16}, 4, v{lane}")
    e(f"v_and_b32 v{t1}, 1, v{kg}")
    e(f"v_lshl_add_u32 v{c2}, v{m}, 1, v{t1}")
    e(f"s_cmp_eq_u32 s{s_wv}, 0")
    e("s_cbranch_scc0 L_fx")
    vFo, vB2o, xo, b2v, gv, vIn, vQp, vQw = [g.v() for _ in range(8)]
    vSc, vHpa, vHpb, vTa, vTb, b1b = [g.v() for _ in range(6)]
    b1a = g.v(2); w2 = g.v(24)
    s_fr = 42
    e(f"s_lshl_b32 s{s_t0}, s{s_wgi}, 10")
    e(f"s_add_u32 s{s_t0}, s{s_t0}, {QBASE}")
    e(f"v_add_u32 v{vPub}, s{s_t0}, v{vl16}")
    e("s_branch L_ln")
    g.lab("L_fx")
    if tlb:
        e(f"s_lshl_b32 s{s_t0}, s{s_h}, 20")
        e(f"s_add_u32 s{s_t0}, s{s_t0}, {3072*256}")
        e(f"v_lshl_add_u32 v{t0}, v{lane}, 25, s{s_t0}")
        e(f"s_lshl_b32 s{s_t0}, s{s_h}, 17")
        e(f"v_mov_b32 v{t1}, s{s_t0}")
        e(f"v_mov_b32 v{t2}, {QBASE}")
        e("s_mov_b64 exec, 3")
        e(f"global_load_dword v{vFo}, v{t0}, {sr(sV,2)}")
        e("s_mov_b64 exec, 1")
        e(f"global_load_dword v{vB2o}, v{t1}, {sr(sWO,2)}")
        e(f"global_load_dword v{xo}, v{t2}, {sr(sW2,2)}")
        e(f"global_load_dword v{b2v}, v{t2}, {sr(sWS,2)} offset:-64")
        e("s_mov_b64 exec, -1")
    e(f"v_lshl_add_u32 v{vPub}, v{kg}, 7, v{m16}")
    e(f"s_lshl_b32 s{s_t0}, s{s_wgi}, 9")
    e(f"s_add_u32 s{s_t0}, s{s_t0}, {HBASE}")
    e(f"v_add_u32 v{vPub}, s{s_t0}, v{vPub}")
    g.lab("L_ln")
    masks_and_tags(False)
    e("s_waitcnt vmcnt(18)")
    stamp()
    for i in range(8):
        e(f"v_lshlrev_b32 v{xl+i}, 16, v{xd+i}")
        e(f"v_and_b32 v{xd+i}, s{s_hi}, v{xd+i}")
    e(f"v_add_f32 v{t0}, v{xl}, v{xd}")
    e(f"v_add_f32 v{t1}, v{xl+1}, v{xd+1}")
    for i in range(2, 8, 2):
        e(f"v_add_f32 v{t0}, v{t0}, v{xl+i}")
        e(f"v_add_f32 v{t1}, v{t1}, v{xl+i+1}")
        e(f"v_add_f32 v{t0}, v{t0}, v{xd+i}")
        e(f"v_add_f32 v{t1}, v{t1}, v{xd+i+1}")
    e(f"v_add_f32 v{t0}, v{t0}, v{t1}")
    red8("v_add_f32", [t0]); redgrp("v_add_f32", t0, t1)
    e(f"v_mul_f32 v{t0}, 0x3b000000, v{t0}")
    for i in range(8):
        e(f"v_sub_f32 v{xl+i}, v{xl+i}, v{t0}")
        e(f"v_sub_f32 v{xd+i}, v{xd+i}, v{t0}")
    e(f"v_mul_f32 v{t1}, v{xl}, v{xl}")
    e(f"v_mul_f32 v{t2}, v{xd}, v{xd}")
    for i in range(1, 8):
        e(f"v_fmac_f32 v{t1}, v{xl+i}, v{xl+i}")
        e(f"v_fmac_f32 v{t2}, v{xd+i}, v{xd+i}")
    e(f"v_add_f32 v{t1}, v{t1}, v{t2}")
    red8("v_add_f32", [t1]); redgrp("v_add_f32", t1, t2)
    e(f"v_mul_f32 v{t1}, 0x3b000000, v{t1}")
    rbf2(t0, t1, t2)
    e(f"v_add_f32 v{t1}, {EPS:#x}, v{t1}")
    rbf(t1, t1)
    e(f"v_sqrt_f32 v{t1}, v{t1}")
    e("s_nop 0")
    rbf(t1, t1)
    e(f"v_rcp_f32 v{t1}, v{t1}")
    e("s_waitcnt vmcnt(16)")
    for i in range(8):
        e(f"v_lshlrev_b32 v{xl+i}, 16, v{xr+i}")
        e(f"v_and_b32 v{xd+i}, s{s_hi}, v{xr+i}")
        e(f"v_sub_f32 v{xl+i}, v{xl+i}, v{t0}")
        e(f"v_sub_f32 v{xd+i}, v{xd+i}, v{t0}")
        rbf2(xl+i, xd+i, t2)
        e(f"v_mul_f32 v{xl+i}, v{xl+i}, v{t1}")
        e(f"v_mul_f32 v{xd+i}, v{xd+i}, v{t1}")
    stamp()
    val = lambda t: (xl if t % 2 == 0 else xd) + t // 2
    afrag(AF, val(0))
    for t in range(16):
        if t < 15: afrag(AF + 4*((t+1) % 2), val(t+1))
        else: e("s_nop 1")
        if t % 4 == 0: e(f"s_waitcnt vmcnt({12 - t})")
        mfma(D, AF + 4*(t % 2), W + 4*t, None if t == 0 else D)
    stamp()
    do_tags()
    tag4(D)
    e(f"s_mov_b32 s{s_cnt}, {spin}")
    e(f"s_cmp_eq_u32 s{s_wv}, 0")
    e("s_cbranch_scc0 L_f2")
    nst_split = nst[0]
    P = W
    if idg: e(f"global_store_dwordx4 v{vPub}, {vr(D,4)}, {sr(sWS,2)}")
    else: publish(vPub, D, True)
    stamp()
    e(f"s_lshl_b32 s{s_t0}, s{s_j}, 2")
    e(f"s_add_u32 s{s_t0}, s{s_t0}, s{s_ido}")
    e(f"v_mov_b32 v{t0}, s{s_t0}")
    e(f"v_mov_b32 v{t1}, s{s_idw}")
    e("s_mov_b64 exec, 1")
    e(f"global_store_dword v{t0}, v{t1}, {sr(sWS,2)} sc1")
    e("s_mov_b64 exec, -1")
    vW2a, vW2b = vX, vXr
    vI = g.v(4)
    e(f"s_mul_i32 s{s_fr}, s{s_g}, 48")
    e(f"s_lshl_b32 s{s_t0}, s{s_j1}, 2")
    e(f"s_add_u32 s{s_fr}, s{s_fr}, s{s_t0}")
    e(f"s_lshl_b32 s{s_t0}, s{s_fr}, 10")
    e(f"s_lshl_b32 s{s_t1}, s{s_cb}, 8")
    e(f"s_add_u32 s{s_t0}, s{s_t0}, s{s_t1}")
    e(f"v_lshl_add_u32 v{vW2a}, v{kg}, 13, v{m16}")
    e(f"v_add_u32 v{vW2a}, s{s_t0}, v{vW2a}")
    e(f"v_and_b32 v{t1}, 1, v{kg}")
    e(f"v_cmp_eq_u32 {sr(sM[0],2)}, 1, v{t1}")
    e(f"v_lshrrev_b32 v{t0}, 1, v{kg}")
    e(f"v_lshlrev_b32 v{t3}, 1, v{t1}")
    e(f"v_lshl_add_u32 v{t3}, v{t0}, 3, v{t3}")
    e(f"s_add_u32 s{s_t0}, s{s_t0}, {32*1024}")
    e(f"v_lshl_add_u32 v{vW2b}, v{t3}, 10, v{m16}")
    e(f"v_add_u32 v{vW2b}, s{s_t0}, v{vW2b}")
    srd(srdB, sW2, 1376*1024); srd(srdC, sB1, 2752)
    for t in range(4):
        e(f"buffer_load_dwordx4 {vr(w2+4*t,4)}, v{vW2a}, {sr(srdB,4)}, 0 offen offset:{t*1024}{fW}")
    for t in range(2):
        e(f"buffer_load_dwordx4 {vr(w2+16+4*t,4)}, v{vW2b}, {sr(srdB,4)}, 0 offen offset:{t*1024}{fW}")
    e(f"s_lshl_b32 s{s_t0}, s{s_fr}, 1")
    e(f"v_lshl_add_u32 v{t2}, v{kg}, 4, s{s_t0}")
    e(f"v_lshl_add_u32 v{t3}, v{t3}, 1, s{s_t0}")
    e(f"buffer_load_dwordx2 {vr(b1a,2)}, v{t2}, {sr(srdC,4)}, 0 offen")
    e(f"buffer_load_dword v{b1b}, v{t3}, {sr(srdC,4)}, 0 offen offset:64")
    s_c, s_k = 13, 14
    e(f"s_lshl_b32 s{s_c}, s{s_h}, 1")
    e(f"s_add_u32 s{s_c}, s{s_c}, s{s_j1}")
    e(f"s_and_b32 s{s_k}, s{s_c}, 15")
    e(f"v_lshlrev_b32 v{t1}, 2, v{t1}")
    e(f"v_and_or_b32 v{t1}, v{kg}, 2, v{t1}")
    e(f"v_and_b32 v{t2}, 3, v{lane}")
    e(f"v_lshl_add_u32 v{t1}, v{t2}, 4, v{t1}")
    e(f"s_lshr_b32 s{s_t0}, s{s_c}, 4")
    e(f"s_lshl_b32 s{s_t0}, s{s_t0}, 8")
    e(f"s_and_b32 s{s_t1}, s{s_k}, 3")
    e(f"s_lshl_b32 s{s_t1}, s{s_t1}, 6")
    e(f"s_add_u32 s{s_t0}, s{s_t0}, s{s_t1}")
    e(f"s_and_b32 s{s_t1}, s{s_k}, 4")
    e(f"s_lshl_b32 s{s_t1}, s{s_t1}, 1")
    e(f"s_add_u32 s{s_t0}, s{s_t0}, s{s_t1}")
    e(f"v_add_u32 v{vB2o}, s{s_t0}, v{t1}")
    e(f"s_and_b32 s{s_t1}, s{s_k}, 8")
    e(f"s_lshl_b32 s{s_t1}, s{s_t1}, 7")
    e(f"v_add_u32 v{vFo}, s{s_t1}, v{vB2o}")
    e(f"global_load_ushort v{xo}, v{vFo}, {sr(sX,2)}")
    e(f"global_load_ushort v{b2v}, v{vB2o}, {sr(sB2,2)}")
    e(f"s_lshr_b32 s{s_t0}, s{s_c}, 4")
    e(f"s_lshl_b32 s{s_t0}, s{s_t0}, 16")
    e(f"s_lshl_b32 s{s_t1}, s{s_k}, 6")
    e(f"s_add_u32 s{s_t0}, s{s_t0}, s{s_t1}")
    e(f"s_add_u32 s{s_t0}, s{s_t0}, {FIN}")
    e(f"v_lshl_add_u32 v{vI}, v{t2}, 4, s{s_t0}")
    e(f"v_lshrrev_b32 v{t2}, 2, v{lane}")
    e(f"v_lshl_add_u32 v{vI}, v{t2}, 10, v{vI}")
    for i in range(1, 4): e(f"v_add_u32 v{vI+i}, {i*16384}, v{vI}")
    e(f"s_lshl_b32 s{s_t1}, s{s_wgi}, 10")
    e(f"s_add_u32 s{s_t1}, s{s_t1}, {ABASE}")
    e(f"v_lshl_add_u32 v{vPf}, v{lane}, 7, s{s_t1}")
    e("s_mov_b64 exec, 0xff")
    if "npt" not in xp: e(f"global_load_dword v{vPf}, v{vPf}, {sr(sWS,2)} sc1")
    e("s_mov_b64 exec, -1")
    tagpair(vTa, vTb, sM[0])
    e(f"s_lshl_b32 s{s_t0}, s{s_h}, 13")
    e(f"s_add_u32 s{s_t0}, s{s_t0}, {QBASE+4096}")
    e(f"v_add_u32 v{vQp}, s{s_t0}, v{vl16}")
    e(f"v_lshrrev_b32 v{t1}, 1, v{kg}")
    e(f"v_lshlrev_b32 v{vQw}, 3, v{c2}")
    e(f"v_lshl_add_u32 v{vQw}, v{t1}, 8, v{vQw}")
    e(f"s_lshl_b32 s{s_t0}, s{s_cb}, 16")
    e(f"s_lshl_b32 s{s_t1}, s{s_c}, 10")
    e(f"s_add_u32 s{s_t0}, s{s_t0}, s{s_t1}")
    e(f"s_add_u32 s{s_t0}, s{s_t0}, {FIN}")
    e(f"v_add_u32 v{vSc}, s{s_t0}, v{vl16}")
    e(f"v_and_b32 v{t0}, 7, v{m}")
    e(f"v_lshrrev_b32 v{t2}, 2, v{bl}")
    e(f"v_lshl_add_u32 v{t2}, v{t0}, 9, v{t2}")
    e(f"s_lshl_b32 s{s_t0}, s{s_h}, 12")
    e(f"s_lshl_b32 s{s_t1}, s{s_j1}, 7")
    e(f"s_add_u32 s{s_t0}, s{s_t0}, s{s_t1}")
    e(f"s_add_u32 s{s_t0}, s{s_t0}, {HBASE}")
    e(f"v_add_u32 v{t2}, s{s_t0}, v{t2}")
    e(f"v_lshl_add_u32 v{vHpa}, v{kg}, 4, v{t2}")
    e(f"v_lshl_add_u32 v{vHpb}, v{kg}, 3, v{t2}")
    e(f"v_mov_b32 v{t3}, 0")
    e(f"v_mov_b32 v{t2}, 1")
    if idg: id_gate("L_gq", vPub, D, None)
    else: smem_gate("L_gq", QBASE, 13, 1024, 1020, 3)
    stamp()
    hp = xl; AF6 = W + 32
    def hloads(sc=" sc1"):
        if "nH" in xp:
            e(f"global_load_dword v{hp}, v{t3}, {sr(sX,2)}"); e(f"global_load_dword v{hp}, v{t3}, {sr(sX,2)}"); return
        e(f"global_load_dwordx4 {vr(hp,4)}, v{vHpa}, {sr(sWS,2)}{sc}")
        e(f"global_load_dwordx2 {vr(hp+4,2)}, v{vHpb}, {sr(sWS,2)} offset:64{sc}")
    g.lab("L_pq")
    for p in range(8):
        e(f"global_load_dwordx4 {vr(P+4*p,4)}, v{vQp}, {sr(sWS,2)} offset:{p*1024-4096} sc1")
    hloads("")
    for p in range(8):
        e(f"s_waitcnt vmcnt({9-p})")
        for r in range(4): e(f"v_xor_b32 v{P+4*p+r}, s{sT[r]}, v{P+4*p+r}")
        if p == 0: e(f"v_or_b32 v{t0}, v{P}, v{P+1}")
        else: e(f"v_or3_b32 v{t0}, v{t0}, v{P+4*p}, v{P+4*p+1}")
        e(f"v_or3_b32 v{t0}, v{t0}, v{P+4*p+2}, v{P+4*p+3}")
    poll_tail(t0, "L_pq")
    stamp()
    sum_n(P, 8)
    e(f"v_cvt_pk_bf16_f32 v{P}, v{P}, v{P+1}")
    e(f"v_cvt_pk_bf16_f32 v{P+1}, v{P+2}, v{P+3}")
    e(f"ds_write_b64 v{vQw}, {vr(P,2)} offset:{L_Q}")
    e("s_waitcnt lgkmcnt(0)")
    e("s_mov_b64 exec, 1")
    e(f"ds_write_b32 v{t3}, v{t2} offset:{L_FL}")
    e("s_mov_b64 exec, -1")
    if not idg: id_issue()
    e(f"s_mov_b32 s{s_cnt}, {spin}")
    e("s_branch L_ph_c")
    g.lab("L_ph")
    hloads()
    g.lab("L_ph_c")
    e("s_waitcnt vmcnt(0)")
    for r in range(4): e(f"v_xor_b32 v{hp+r}, s{sT[r]}, v{hp+r}")
    e(f"v_xor_b32 v{hp+4}, v{vTa}, v{hp+4}")
    e(f"v_xor_b32 v{hp+5}, v{vTb}, v{hp+5}")
    e(f"v_or_b32 v{t0}, v{hp+4}, v{hp+5}")
    for i in range(0, 4, 2): e(f"v_or3_b32 v{t0}, v{t0}, v{hp+i}, v{hp+i+1}")
    if "nH" in xp: e(f"v_mov_b32 v{t0}, 0")
    poll_tail(t0, "L_ph")
    red8("v_add_f32", [hp+i for i in range(6)])
    for i in range(0, 6, 2): rbf2(hp+i, hp+i+1, t0)
    bsrc = [b1a, b1a+1, b1b]
    for i in range(3):
        e(f"v_lshlrev_b32 v{t0}, 16, v{bsrc[i]}")
        e(f"v_and_b32 v{t1}, s{s_hi}, v{bsrc[i]}")
        e(f"v_add_f32 v{hp+2*i}, v{hp+2*i}, v{t0}")
        e(f"v_add_f32 v{hp+2*i+1}, v{hp+2*i+1}, v{t1}")
    for i in range(0, 6, 2): rbf2(hp+i, hp+i+1, t0)
    for i in range(6): e(f"v_max_f32 v{hp+i}, 0, v{hp+i}")
    for i in range(6): e(f"v_mul_f32 v{hp+i}, v{hp+i}, v{hp+i}")
    for i in range(6): afrag(AF6+4*i, hp+i)
    e("s_nop 1")
    for i in range(6): mfma(D, AF6+4*i, w2+4*i, None if i == 0 else D)
    vMr, vOr, vMs, vZ = vX, vXr, vW, vPf
    fw = xd; MLv = xl
    e("s_nop 2")
    e(f"v_and_b32 v{vZ}, 1, v{lane}")
    e(f"v_lshlrev_b32 v{vMr}, 6, v{vZ}")
    e(f"v_lshrrev_b32 v{t0}, 1, v{lane}")
    e(f"v_mul_u32_u24 v{vOr}, {4*OPS}, v{vZ}")
    e(f"v_lshl_add_u32 v{vOr}, v{t0}, 4, v{vOr}")
    tag4(D)
    if "nF" not in xp and not flate: e(f"global_store_dwordx4 v{vSc}, {vr(D,4)}, {sr(sWS,2)} sc1")
    stamp()
    e(f"s_lshl_b32 s{s_t0}, s{s_wgi}, 4")
    e(f"s_add_u32 s{s_t0}, s{s_t0}, {MLBASE}")
    e(f"v_lshl_add_u32 v{vMs}, v{vZ}, 3, s{s_t0}")
    e(f"s_lshl_b32 s{s_t0}, s{s_h}, 13")
    e(f"s_lshl_b32 s{s_t1}, s{s_j}, {4+al}")
    e(f"s_add_u32 s{s_t0}, s{s_t0}, s{s_t1}")
    e(f"s_add_u32 s{s_t0}, s{s_t0}, {ABASE}")
    e(f"v_lshrrev_b32 v{t0}, {al}, v{lane}")
    e(f"v_lshl_add_u32 v{vPub}, v{t0}, {7+al}, s{s_t0}")
    e(f"v_and_b32 v{t0}, {(1<<al)-1}, v{lane}")
    e(f"v_lshl_add_u32 v{vPub}, v{t0}, 4, v{vPub}")
    e("s_waitcnt lgkmcnt(0)")
    if not idg: id_check()
    e(f"v_cmp_eq_u32 {sr(sM[0],2)}, 1, v{vZ}")
    tagpair(vTa, vTb, sM[0])
    e(f"v_mov_b32 v{vZ}, 0")
    e(f"v_lshlrev_b32 v{b2v}, 16, v{b2v}")
    e(f"v_lshlrev_b32 v{xo}, 16, v{xo}")
    e(f"s_mov_b32 s{s_cnt}, {spin*16}")
    g.lab("L_wm")
    for i in range(4): e(f"ds_read_b128 {vr(P+4*i,4)}, v{vMr} offset:{L_ML+16*i}")
    e("s_waitcnt lgkmcnt(0)")
    e(f"v_and_b32 v{t0}, v{P+2}, v{P+6}")
    e(f"v_and_b32 v{t1}, v{P+10}, v{P+14}")
    e(f"v_and_b32 v{t0}, v{t0}, v{t1}")
    e(f"v_cmp_ne_u32 vcc, 1, v{t0}")
    e("s_cbranch_vccz L_wm_ok")
    e("s_sleep 1")
    e(f"s_sub_u32 s{s_cnt}, s{s_cnt}, 1")
    e(f"s_cmp_lg_u32 s{s_cnt}, 0")
    e("s_cbranch_scc1 L_wm")
    g.lab("L_wm_ok")
    e(f"v_max3_f32 v{MLv}, v{P}, v{P+4}, v{P+8}")
    e(f"v_max_f32 v{MLv}, v{MLv}, v{P+12}")
    for i in range(4): e(f"v_sub_f32 v{fw+i}, v{P+4*i}, v{MLv}")
    for i in range(4): e(f"v_mul_f32 v{fw+i}, s{s_l2e}, v{fw+i}")
    for i in range(4): e(f"v_exp_f32 v{fw+i}, v{fw+i}")
    e(f"v_mul_f32 v{MLv+1}, v{fw}, v{P+1}")
    for i in range(1, 4): e(f"v_fmac_f32 v{MLv+1}, v{fw+i}, v{P+4*i+1}")
    e(f"v_and_or_b32 v{MLv}, v{MLv}, v{vFF}, v{vTa}")
    e(f"v_and_or_b32 v{MLv+1}, v{MLv+1}, v{vFF}, v{vTb}")
    e("s_mov_b64 exec, 3")
    publish(vMs, MLv, n4=2)
    e("s_mov_b64 exec, -1")
    Q = P + 16; QB = P + 32
    def inl(Q):
        for i in range(4): e(f"global_load_dwordx4 {vr(Q+4*i,4)}, v{vI+i}, {sr(sWS,2)} sc1")
    def chk(Q, extra=0):
        for i in range(4):
            e(f"s_waitcnt vmcnt({3-i+extra})")
            for r in range(4): e(f"v_xor_b32 v{Q+4*i+r}, s{sT[r]}, v{Q+4*i+r}")
            if i == 0: e(f"v_or_b32 v{t0}, v{Q}, v{Q+1}")
            else: e(f"v_or3_b32 v{t0}, v{t0}, v{Q+4*i}, v{Q+4*i+1}")
            e(f"v_or3_b32 v{t0}, v{t0}, v{Q+4*i+2}, v{Q+4*i+3}")
            if i:
                for r in range(4): e(f"v_add_f32 v{Q+r}, v{Q+r}, v{Q+4*i+r}")
    def red64(Q):
        e(f"v_permlane32_swap_b32 v{Q}, v{Q+1}")
        e(f"v_permlane32_swap_b32 v{Q+2}, v{Q+3}")
        e(f"v_add_f32 v{Q}, v{Q}, v{Q+1}")
        e(f"v_add_f32 v{Q+2}, v{Q+2}, v{Q+3}")
        e("s_nop 1")
        e(f"v_permlane16_swap_b32 v{Q}, v{Q+2}")
        e(f"v_add_f32 v{Q}, v{Q}, v{Q+2}")
        for ctl in ("row_ror:8", "row_ror:4"):
            e("s_nop 1"); dpp("v_add_f32", Q, Q, Q, ctl)
        rbf(Q, Q)
    if not flate:
        e(f"s_cmp_ge_u32 s{s_j}, 2")
        e("s_cbranch_scc1 L_nof")
        inl(Q)
        g.lab("L_nof")
    e(f"s_mov_b32 s{s_cnt}, {spin}")
    e("s_barrier")
    for i in range(4): e(f"ds_read_b128 {vr(P+4*i,4)}, v{vOr} offset:{L_OP+OPS*i}")
    e("s_waitcnt lgkmcnt(3)")
    for r in range(4): e(f"v_mul_f32 v{P+r}, v{P+r}, v{fw}")
    for i in range(1, 4):
        e(f"s_waitcnt lgkmcnt({3-i})")
        for r in range(4): e(f"v_fmac_f32 v{P+r}, v{P+4*i+r}, v{fw+i}")
    tag4(P)
    publish(vPub, P)
    stamp()
    if not flate:
        if b4b: e("s_barrier")
        e(f"s_cmp_ge_u32 s{s_j}, 2")
        e("s_cbranch_scc1 L_noep")
        s_ph = 15
        e(f"s_mov_b32 s{s_ph}, 0")
        chk(Q, 1)
        e(f"v_and_b32 v{t0}, 0xff, v{t0}")
        e(f"v_cmp_ne_u32 vcc, 0, v{t0}")
        e("s_cbranch_vccz L_pf_ok")
        e(f"s_mov_b32 s{s_ph}, 1")
        e("s_barrier")
        if b6: e("s_barrier")
        g.lab("L_pf")
        inl(Q)
        chk(Q)
        poll_tail(t0, "L_pf")
        stamp()
        for i in range(4): e(f"v_add_u32 v{vI+i}, {BIN-FIN}, v{vI+i}")
        red64(Q)
        e(f"v_add_f32 v{Q}, v{Q}, v{b2v}")
        rbf(Q, Q)
        e(f"v_mul_f32 v{t0}, s{s_l2e}, v{Q}")
        e(f"v_exp_f32 v{t0}, -v{t0}")
        e("s_nop 0")
        e(f"v_add_f32 v{t0}, 1.0, v{t0}")
        e(f"v_rcp_f32 v{t0}, v{t0}")
        e("s_nop 0")
        e(f"v_mul_f32 v{gv}, v{Q}, v{t0}")
        rbf(gv, gv)
        e(f"s_mov_b32 s{s_cnt}, {spin}")
        e(f"s_cmp_eq_u32 s{s_ph}, 1")
        e("s_cbranch_scc1 L_nb")
        e("s_barrier")
        if b6: e("s_barrier")
        g.lab("L_nb")
        inl(QB)
    else:
        if flate == 1: e(f"global_store_dwordx4 v{vSc}, {vr(D,4)}, {sr(sWS,2)} sc1")
        e("s_barrier")
        if flate == 2:
            e("s_barrier")
            e(f"global_store_dwordx4 v{vSc}, {vr(D,4)}, {sr(sWS,2)} sc1")
        e(f"s_cmp_ge_u32 s{s_j}, 2")
        e("s_cbranch_scc1 L_noep")
        vJ = w2
        for i in range(4): e(f"v_add_u32 v{vJ+i}, {BIN-FIN}, v{vI+i}")
        if flate == 1: e("s_barrier")
        e("s_barrier")
        g.lab("L_pf")
        inl(Q)
        if bsl: e(f"s_sleep {bsl}")
        for i in range(4): e(f"global_load_dwordx4 {vr(QB+4*i,4)}, v{vJ+i}, {sr(sWS,2)} sc1")
        chk(Q, 4)
        poll_tail(t0, "L_pf")
        stamp()
        for i in range(4): e(f"v_mov_b32 v{vI+i}, v{vJ+i}")
        red64(Q)
        e(f"v_add_f32 v{Q}, v{Q}, v{b2v}")
        rbf(Q, Q)
        e(f"v_mul_f32 v{t0}, s{s_l2e}, v{Q}")
        e(f"v_exp_f32 v{t0}, -v{t0}")
        e("s_nop 0")
        e(f"v_add_f32 v{t0}, 1.0, v{t0}")
        e(f"v_rcp_f32 v{t0}, v{t0}")
        e("s_nop 0")
        e(f"v_mul_f32 v{gv}, v{Q}, v{t0}")
        rbf(gv, gv)
        e(f"s_mov_b32 s{s_cnt}, {spin}")
    if bp == 1:
        e("s_branch L_pb_c")
        g.lab("L_pb")
        inl(QB)
        g.lab("L_pb_c")
        chk(QB)
        poll_tail(t0, "L_pb")
    else:
        sets = [QB, P + 48, P][:bp]
        ACC = xd
        for k in range(1, bp - 1): inl(sets[k])
        g.lab("L_pb")
        for k in range(bp):
            inl(sets[(k + bp - 1) % bp])
            Z = sets[k]; base = 4 * (bp - 1)
            for i in range(4):
                e(f"s_waitcnt vmcnt({base+3-i})")
                for r in range(4): e(f"v_xor_b32 v{Z+4*i+r}, s{sT[r]}, v{Z+4*i+r}")
                if i == 0: e(f"v_or_b32 v{t0}, v{Z}, v{Z+1}")
                else: e(f"v_or3_b32 v{t0}, v{t0}, v{Z+4*i}, v{Z+4*i+1}")
                e(f"v_or3_b32 v{t0}, v{t0}, v{Z+4*i+2}, v{Z+4*i+3}")
                if i:
                    for r in range(4): e(f"v_add_f32 v{ACC+r}, v{(Z if i == 1 else ACC)+r}, v{Z+4*i+r}")
            e(f"v_and_b32 v{t0}, 0xff, v{t0}")
            e(f"v_cmp_ne_u32 vcc, 0, v{t0}")
            e("s_cbranch_vccz L_pb_ok")
        e(f"s_sub_u32 s{s_cnt}, s{s_cnt}, 1")
        e(f"s_cmp_lg_u32 s{s_cnt}, 0")
        e("s_cbranch_scc1 L_pb")
        g.lab("L_pb_ok")
        QB = ACC
    stamp()
    red64(QB)
    e(f"v_mul_f32 v{QB}, v{QB}, v{gv}")
    rbf(QB, QB)
    e(f"v_add_f32 v{QB}, v{QB}, v{xo}")
    e(f"v_cvt_pk_bf16_f32 v{QB}, v{QB}, v{QB}")
    e("s_mov_b32 exec_lo, 0x000f000f"); e("s_mov_b32 exec_hi, 0x000f000f")
    e(f"global_store_short v{vFo}, v{QB}, {sr(sOUT,2)}")
    e("s_cmp_lg_u32 s2, 0")
    e("s_cbranch_scc1 L_noep")
    e(f"s_add_u32 s{s_t0}, s{s_E}, 1")
    e(f"v_mov_b32 v{t0}, s{s_t0}")
    e("s_mov_b64 exec, 1")
    e(f"global_store_dword v{vZ}, v{t0}, {sr(sWS,2)}")
    g.lab("L_noep")
    stamp()
    dump_stamps(w2+4)
    e("s_endpgm")
    g.lab("L_f2")
    nst[0] = nst_split
    e("s_mov_b32 exec_lo, 0x00ff00ff"); e("s_mov_b32 exec_hi, 0x00ff00ff")
    if idg:
        e(f"global_store_dwordx4 v{vPub}, {vr(D,4)}, {sr(sWS,2)}")
        id_gate("L_gh", vPub, D, None)
    else: publish(vPub, D, True)
    stamp()
    dump_stamps(W+32)
    e("s_endpgm")

    g.lab("L_stream")
    nst[0] = 1 if diag else 0
    g.reset(common_end)
    vKa = g.v(4); vKr = g.v(4)
    vV, vWo, vQr, vOw, vAp, vMp, vMw, vL, vSr, vSc, vTa, vTb, vTc, vTd, vZ, fv = [g.v() for _ in range(16)]
    mw = g.v(4); lw = mw + 1
    ml = g.v(2); op = g.v(4); op2 = g.v(4)
    s_par = 68
    qf = g.v(16); Kf = g.v(32); Vf = g.v(32); wo = g.v(8)
    D0 = g.v(4); D1 = g.v(4)
    A0 = qf; A1 = qf + 4
    s_sw, s_bw, s_kv = 13, 14, 15
    e(f"s_sub_u32 s{s_sw}, s{s_wv}, 2")
    e(f"s_lshr_b32 s{s_bw}, s{s_sw}, 2")
    e(f"s_and_b32 s{s_t0}, s{s_sw}, 3")
    e(f"s_lshl_b32 s{s_t0}, s{s_t0}, 13")
    e(f"s_lshl_b32 s{s_kv}, s{s_bw}, 25")
    e(f"s_lshl_b32 s{s_t1}, s{s_h}, 20")
    e(f"s_add_u32 s{s_kv}, s{s_kv}, s{s_t1}")
    e(f"s_add_u32 s{s_kv}, s{s_kv}, s{s_t0}")
    e(f"s_lshl_b32 s{s_t1}, s{s_j}, 15")
    e(f"s_add_u32 s{s_kv}, s{s_kv}, s{s_t1}")
    e(f"s_add_u32 s{s_kv}, s{s_kv}, {3072*256}")
    s_c2, s_cK, s_cV, s_m0b, s_so = 42, 43, 60, 61, 62
    if perm:
        e(f"s_lshl_b32 s{s_t0}, s2, 3")
        e(f"s_add_u32 s{s_t0}, s{s_t0}, s{s_sw}")
        e(f"s_mul_i32 s{s_t0}, s{s_t0}, 0x9e3779b1")
        e(f"s_lshr_b32 s{s_t0}, s{s_t0}, 29")
    else:
        e(f"s_mov_b32 s{s_t0}, 0")
    e(f"s_and_b32 s{s_c2}, s{s_t0}, 3")
    e(f"s_lshl_b32 s{s_cK}, s{s_t0}, 10")
    e(f"s_and_b32 s{s_cV}, s{s_cK}, 0x1000")
    e(f"s_lshl_b32 s{s_t1}, s{s_c2}, 8")
    e(f"s_or_b32 s{s_cV}, s{s_cV}, s{s_t1}")
    e(f"s_lshl_b32 s{s_t1}, s{s_c2}, 2")
    e(f"v_xor_b32 v{t0}, v{m}, v{kg}")
    e(f"v_xor_b32 v{t0}, s{s_t1}, v{t0}")
    e(f"v_lshl_add_u32 v{t1}, v{kg}, 8, s{s_kv}")
    for i in range(4):
        if i: e(f"v_xor_b32 v{t2}, {4*i}, v{t0}")
        e(f"v_lshl_add_u32 v{vKa+i}, v{t2 if i else t0}, 4, v{t1}")
    e(f"s_lshl_b32 s{s_m0b}, s{s_sw}, 13")
    e(f"s_add_u32 s{s_m0b}, s{s_m0b}, {L_K}")
    e(f"s_and_b32 s{s_t1}, s{s_cK}, 0xc00")
    e(f"s_or_b32 s{s_m0b}, s{s_m0b}, s{s_t1}")
    e(f"v_lshl_add_u32 v{vV}, v{kg}, {8 if 'vlin' in xp else 10}, s{s_kv}")
    if 'vlin' in xp: e(f"s_mov_b32 s{s_cV}, s{s_cK}")
    e(f"v_add_u32 v{vV}, v{vV}, v{m16}")
    e(f"s_mov_b32 s{srdA+2}, {1<<26}"); e(f"s_mov_b32 s{srdA+3}, 0x20000")
    e(f"s_mov_b32 s{srdB+2}, {1<<26}"); e(f"s_mov_b32 s{srdB+3}, 0x20000")
    e("s_waitcnt lgkmcnt(0)")
    e(f"s_mov_b32 s{srdA}, s{sK}"); e(f"s_mov_b32 s{srdA+1}, s{sK+1}")
    e(f"s_mov_b32 s{srdB}, s{sV}"); e(f"s_mov_b32 s{srdB+1}, s{sV+1}")
    e(f"s_load_dword s{s_E}, {sr(sWS,2)}, 0")
    if not early:
        e("s_barrier")
        stamp()
    def prep():
        masks_and_tags()
        e(f"s_lshl_b32 s{s_t0}, s{s_h}, 7")
        e(f"s_lshl_b32 s{s_t1}, s{s_j1}, 6")
        e(f"s_add_u32 s{s_t0}, s{s_t0}, s{s_t1}")
        e(f"s_lshr_b32 s{s_t1}, s{s_sw}, 1")
        e(f"s_lshl_b32 s{s_t1}, s{s_t1}, 4")
        e(f"s_add_u32 s{s_t0}, s{s_t0}, s{s_t1}")
        e(f"s_and_b32 s{s_t1}, s{s_sw}, 1")
        e(f"s_lshl_b32 s{s_t1}, s{s_t1}, 1")
        e(f"s_add_u32 s{s_t0}, s{s_t0}, s{s_t1}")
        e(f"s_lshl_b32 s{s_t0}, s{s_t0}, 10")
        e(f"s_lshl_b32 s{s_t1}, s{s_cb}, 8")
        e(f"s_add_u32 s{s_t0}, s{s_t0}, s{s_t1}")
        e(f"v_lshl_add_u32 v{vWo}, v{kg}, 12, v{m16}")
        e(f"v_add_u32 v{vWo}, s{s_t0}, v{vWo}")
        e(f"s_lshl_b32 s{s_t0}, s{s_bw}, 8")
        e(f"v_lshl_add_u32 v{vQr}, v{kg}, 4, s{s_t0}")
        e(f"v_mov_b32 v{vZ}, 0")
        e(f"s_lshl_b32 s{s_t0}, s{s_sw}, 13")
        e(f"s_add_u32 s{s_t0}, s{s_t0}, {L_K}")
        e(f"v_xor_b32 v{t0}, s{s_c2}, v{m}")
        e(f"v_lshl_add_u32 v{t1}, v{t0}, 8, s{s_t0}")
        e(f"v_xor_b32 v{t0}, v{t0}, v{kg}")
        for s in range(4):
            if s: e(f"v_xor_b32 v{t2}, {4*s}, v{t0}")
            e(f"v_lshl_add_u32 v{vKr+s}, v{t2 if s else t0}, 4, v{t1}")
        e(f"s_mul_i32 s{s_t0}, s{s_sw}, {OPS}")
        e(f"v_lshl_add_u32 v{vOw}, v{m}, 5, s{s_t0}")
        e(f"v_lshl_add_u32 v{vOw}, v{kg}, 4, v{vOw}")
        e(f"s_lshl_b32 s{s_t0}, s{s_sw}, 4")
        e(f"v_mov_b32 v{vMw}, s{s_t0}")
        e(f"v_and_b32 v{t0}, 7, v0")
        e(f"s_lshl_b32 s{s_t0}, s{s_h}, 13")
        e(f"s_lshl_b32 s{s_t1}, s{s_j1}, 12")
        e(f"s_add_u32 s{s_t0}, s{s_t0}, s{s_t1}")
        e(f"s_lshr_b32 s{s_t1}, s{s_sw}, 1")
        e(f"s_lshl_b32 s{s_t1}, s{s_t1}, 10")
        e(f"s_add_u32 s{s_t0}, s{s_t0}, s{s_t1}")
        e(f"s_add_u32 s{s_t0}, s{s_t0}, {ABASE}")
        e(f"v_lshl_add_u32 v{vAp}, v{t0}, {4+al}, s{s_t0}")
        e(f"v_lshrrev_b32 v{t1}, {3+al}, v{lane}")
        e(f"v_lshl_add_u32 v{vAp}, v{t1}, {7+al}, v{vAp}")
        e(f"v_bfe_u32 v{t1}, v{lane}, 3, {al}")
        e(f"v_lshl_add_u32 v{vAp}, v{t1}, 4, v{vAp}")
        e(f"v_lshrrev_b32 v{t1}, 7, v{bl}")
        e(f"v_lshl_add_u32 v{vMp}, v{t0}, 4, v{t1}")
        e(f"s_lshl_b32 s{s_t0}, s{s_h}, 7")
        e(f"s_add_u32 s{s_t0}, s{s_t0}, {MLBASE}")
        e(f"v_add_u32 v{vMp}, s{s_t0}, v{vMp}")
        e(f"s_mul_i32 s{s_t0}, s{s_sw}, {SPS}")
        e(f"v_lshl_add_u32 v{vL}, v{lane}, 4, s{s_t0}")
        e(f"v_lshl_add_u32 v{t1}, v{kg}, 3, v{t0}")
        e(f"s_lshl_b32 s{s_t0}, s{s_sw}, 9")
        e(f"v_lshl_add_u32 v{t1}, v{t1}, 4, s{s_t0}")
        e(f"v_lshl_add_u32 v{vSr}, v{bl}, 2, v{t1}")
        e(f"s_lshl_b32 s{s_t0}, s{s_cb}, 16")
        e(f"s_lshl_b32 s{s_t1}, s{s_h}, 11")
        e(f"s_add_u32 s{s_t0}, s{s_t0}, s{s_t1}")
        e(f"s_lshl_b32 s{s_t1}, s{s_j1}, 10")
        e(f"s_add_u32 s{s_t0}, s{s_t0}, s{s_t1}")
        e(f"s_add_u32 s{s_t0}, s{s_t0}, {BIN}")
        e(f"v_add_u32 v{vSc}, s{s_t0}, v{t1}")
        e(f"v_cmp_ne_u32 {sr(sM[1],2)}, 0, v{bl}")
        e(f"s_bitcmp1_b32 s{s_sw}, 0")
        e(f"s_cselect_b64 {sr(s_par,2)}, -1, 0")
        tagpair(vTc, vTd, sM[1])
        e(f"v_mov_b32 v{mw+2}, 1"); e(f"v_mov_b32 v{mw+3}, 1")
    dn = sched or [vd]*16
    first_wait = min(n for n in range(16) if n >= dn[n])
    s_nx = 63
    w3 = 2 if wol == 3 else 1 if wol == 6 else 0
    def vload(n):
        i = n - 8
        e(f"s_xor_b32 s{s_so}, s{s_cV}, {(i//4)*4096+(i%4)*256}")
        e(f"buffer_load_dwordx4 {vr(Vf+i*4,4)}, v{vV}, {sr(srdB,4)}, s{s_so} offen{fV}")
    def woload():
        e(f"global_load_dwordx4 {vr(wo,4)}, v{vWo}, {sr(sWO,2)}{fW}")
        e(f"global_load_dwordx4 {vr(wo+4,4)}, v{vWo}, {sr(sWO,2)} offset:1024{fW}")
    for n in range(16):
        vd = dn[n]
        if early and n == early:
            e("s_barrier")
            stamp()
        if n == first_wait: prep()
        if n < 8:
            e(f"s_xor_b32 m0, s{s_m0b}, {n*1024}")
            e(f"s_xor_b32 s{s_so}, s{s_cK}, {n*1024}")
            if n >= vd: e(f"s_waitcnt vmcnt({vd-1})")
            e(f"buffer_load_dwordx4 v{vKa+n%4}, {sr(srdA,4)}, s{s_so} offen{fK} lds")
            if n == 7 and wol in (3, 6):
                e(f"s_waitcnt vmcnt({vd-1})")
                e(f"global_load_dwordx4 {vr(wo,4)}, v{vWo}, {sr(sWO,2)}{fW}")
            if n == 7 and wol == 3:
                e(f"s_waitcnt vmcnt({vd-1})")
                e(f"global_load_dwordx4 {vr(wo+4,4)}, v{vWo}, {sr(sWO,2)} offset:1024{fW}")
        else:
            e(f"s_waitcnt vmcnt({vd-1})")
            vload(n)
            if n == 8: stamp()
            if burst and n < 15 and n + w3 - (vd - 1) >= 8 - 1:
                e(f"ds_read_b32 v{fv}, v{vZ} offset:{L_FL}")
                e("s_waitcnt lgkmcnt(0)")
                e(f"v_cmp_ne_u32 vcc, 1, v{fv}")
                e(f"s_cbranch_vccz L_c{n}")
    e(f"s_mov_b32 s{s_nx}, 16")
    e(f"s_waitcnt vmcnt({8+w3})")
    e("s_branch L_qk")
    nxs = set()
    if burst:
        for n in range(8, 15):
            if not (n + w3 - (dn[n] - 1) >= 7): continue
            g.lab(f"L_c{n}")
            last = min(15, n + top)
            for k in range(n + 1, last + 1): vload(k)
            e(f"s_mov_b32 s{s_nx}, {last+1}")
            nxs.add(last + 1)
            e(f"s_waitcnt vmcnt({last-7+w3})")
            if n < 14: e("s_branch L_qk")
    g.lab("L_qk")
    for u in range(2):
        for s in range(4): e(f"ds_read_b128 {vr(Kf+(u*4+s)*4,4)}, v{vKr+s} offset:{u*4096}")
    stamp()
    e(f"s_mov_b32 s{s_cnt}, {spin*16}")
    g.lab("L_wq")
    e(f"ds_read_b32 v{fv}, v{vZ} offset:{L_FL}")
    for s in range(4): e(f"ds_read_b128 {vr(qf+4*s,4)}, v{vQr} offset:{L_Q+64*s}")
    e("s_waitcnt lgkmcnt(0)")
    e(f"v_cmp_ne_u32 vcc, 1, v{fv}")
    e("s_cbranch_vccz L_wq_ok")
    e("s_sleep 2")
    e(f"s_sub_u32 s{s_cnt}, s{s_cnt}, 1")
    e(f"s_cmp_lg_u32 s{s_cnt}, 0")
    e("s_cbranch_scc1 L_wq")
    g.lab("L_wq_ok")
    stamp()
    for s in range(4):
        mfma(D0, Kf+4*s, qf+4*s, None if s == 0 else D0)
        mfma(D1, Kf+16+4*s, qf+4*s, None if s == 0 else D1)
    e("s_nop 7")
    assert D1 == D0 + 4
    S = D0
    for i in range(0, 8, 2): rbf2(S+i, S+i+1, t0)
    for i in range(8): e(f"v_mul_f32 v{S+i}, s{s_scale}, v{S+i}")
    for i in range(0, 8, 2): rbf2(S+i, S+i+1, t0)
    e(f"v_max3_f32 v{mw}, v{S}, v{S+1}, v{S+2}")
    e(f"v_max3_f32 v{mw}, v{mw}, v{S+3}, v{S+4}")
    e(f"v_max3_f32 v{mw}, v{mw}, v{S+5}, v{S+6}")
    e(f"v_max_f32 v{mw}, v{mw}, v{S+7}")
    redgrp("v_max_f32", mw, t0)
    for i in range(8): e(f"v_sub_f32 v{S+i}, v{S+i}, v{mw}")
    for i in range(8): e(f"v_mul_f32 v{S+i}, s{s_l2e}, v{S+i}")
    for i in range(8): e(f"v_exp_f32 v{S+i}, v{S+i}")
    e(f"v_add_f32 v{lw}, v{S}, v{S+1}")
    for i in range(2, 8): e(f"v_add_f32 v{lw}, v{lw}, v{S+i}")
    redgrp("v_add_f32", lw, t0)
    e("s_mov_b64 exec, 1")
    e(f"ds_write_b128 v{vMw}, {vr(mw,4)} offset:{L_ML}")
    e("s_mov_b64 exec, -1")
    lo = min(nxs | {16})
    for k in sorted(nxs | {16}, reverse=True):
        if k > lo:
            e(f"s_cmp_eq_u32 s{s_nx}, {k}")
            e(f"s_cbranch_scc1 L_u{k}")
    for k in range(lo, 16):
        if k > lo: g.lab(f"L_u{k}")
        if rd: e(f"s_waitcnt vmcnt({rd-1})")
        vload(k)
    if lo < 16: g.lab("L_u16")
    if wol == 0: woload()
    for i in range(8): afrag(Kf+4*i, S+i)
    e(f"s_mov_b32 s{s_cnt}, {spin}")
    stamp()
    nwo = 2 if wol == 0 else 0
    for i in range(8):
        if wol >= 10 and i == wol - 10:
            woload(); nwo = 2
        e(f"s_waitcnt vmcnt({7-i+nwo})")
        mfma(D0, Kf+4*i, Vf+4*i, None if i == 0 else D0)
    stamp()
    if wol in (5, 6): e("s_nop 0")
    else: e(f"global_load_dwordx2 {vr(ml,2)}, v{vMp}, {sr(sWS,2)} sc1")
    if wol == 1:
        woload(); e("s_nop 3")
    else:
        e("s_nop 5")
    e("s_mov_b32 exec_hi, 0")
    e(f"ds_write_b128 v{vOw}, {vr(D0,4)} offset:{L_OP}")
    e("s_mov_b32 exec_hi, -1")
    e("s_waitcnt lgkmcnt(0)")
    e("s_barrier")
    if wol == 2: woload()
    if wol in (5, 6):
        e(f"global_load_dwordx2 {vr(ml,2)}, v{vMp}, {sr(sWS,2)} sc1")
        e("s_barrier")
        if wol == 5: woload()
        else: e(f"global_load_dwordx4 {vr(wo+4,4)}, v{vWo}, {sr(sWO,2)} offset:1024{fW}")
    if mlop and not b4b: e(f"global_load_dwordx4 {vr(op,4)}, v{vAp}, {sr(sWS,2)} sc1")
    e(f"s_waitcnt vmcnt({(2 if wol in (1, 2, 5) else 1 if wol == 6 else 0) + (1 if mlop and not b4b else 0)})")
    e("s_branch L_pml_c")
    g.lab("L_pml")
    e(f"global_load_dwordx2 {vr(ml,2)}, v{vMp}, {sr(sWS,2)} sc1")
    e("s_waitcnt vmcnt(0)")
    g.lab("L_pml_c")
    e(f"v_xor_b32 v{ml}, v{ml}, v{vTc}")
    e(f"v_xor_b32 v{ml+1}, v{ml+1}, v{vTd}")
    e(f"v_or_b32 v{t0}, v{ml}, v{ml+1}")
    poll_tail(t0, "L_pml", slp)
    stamp()
    e(f"v_mov_b32 v{t0}, v{ml}")
    red8("v_max_f32", [t0])
    e(f"v_sub_f32 v{t0}, v{ml}, v{t0}")
    e(f"v_mul_f32 v{t0}, s{s_l2e}, v{t0}")
    e(f"v_exp_f32 v{t0}, v{t0}")
    if b4b: e("s_nop 0")
    else: e(f"global_load_dwordx4 {vr(op2 if mlop else op,4)}, v{vAp}, {sr(sWS,2)} sc1")
    e(f"v_mul_f32 v{t1}, v{t0}, v{ml+1}")
    red8("v_add_f32", [t1])
    e(f"v_rcp_f32 v{t1}, v{t1}")
    e(f"s_mov_b32 s{s_cnt}, {spin}")
    e(f"v_mul_f32 v{t3}, v{t0}, v{t1}")
    if b4b:
        if wol not in (5, 6): e("s_barrier")
        if wol == 4: woload()
        e(f"global_load_dwordx4 {vr(op,4)}, v{vAp}, {sr(sWS,2)} sc1")
        if mlop:
            e("s_sleep 1")
            e(f"global_load_dwordx4 {vr(op2,4)}, v{vAp}, {sr(sWS,2)} sc1")
    def opchk(z):
        for r in range(4): e(f"v_xor_b32 v{z+r}, s{sT[r]}, v{z+r}")
        e(f"v_or_b32 v{t0}, v{z}, v{z+1}")
        e(f"v_or3_b32 v{t0}, v{t0}, v{z+2}, v{z+3}")
    if not mlop:
        e("s_branch L_pa2")
        g.lab("L_pa")
        e(f"global_load_dwordx4 {vr(op,4)}, v{vAp}, {sr(sWS,2)} sc1")
        g.lab("L_pa2")
        e("s_waitcnt vmcnt(0)")
        opchk(op)
        poll_tail(t0, "L_pa", slp)
        stamp()
        e(f"v_cndmask_b32 v{op}, v{op}, v{op+2}, {sr(s_par,2)}")
        e(f"v_cndmask_b32 v{op+1}, v{op+1}, v{op+3}, {sr(s_par,2)}")
    else:
        g.lab("L_pa")
        for z, o in ((op, op2), (op2, op)):
            e("s_waitcnt vmcnt(1)")
            opchk(z)
            e(f"v_cndmask_b32 v{ml}, v{z}, v{z+2}, {sr(s_par,2)}")
            e(f"v_cndmask_b32 v{ml+1}, v{z+1}, v{z+3}, {sr(s_par,2)}")
            e(f"v_and_b32 v{t0}, 0xff, v{t0}")
            e(f"v_cmp_ne_u32 vcc, 0, v{t0}")
            e("s_cbranch_vccz L_pa_ok")
            if slp: e(f"s_sleep {slp}")
            e(f"global_load_dwordx4 {vr(z,4)}, v{vAp}, {sr(sWS,2)} sc1")
        e(f"s_sub_u32 s{s_cnt}, s{s_cnt}, 1")
        e(f"s_cmp_lg_u32 s{s_cnt}, 0")
        e("s_cbranch_scc1 L_pa")
        g.lab("L_pa_ok")
        stamp()
        op = ml
    e(f"v_mul_f32 v{op}, v{op}, v{t3}")
    e(f"v_mul_f32 v{op+1}, v{op+1}, v{t3}")
    red8("v_add_f32", [op, op+1])
    afrag(A0, op); afrag(A1, op+1)
    e("s_nop 0")
    mfma(D0, A0, wo, None)
    mfma(D0, A1, wo+4, D0)
    e("s_nop 7")
    e(f"ds_write_b128 v{vL}, {vr(D0,4)} offset:{L_SP}")
    e("s_waitcnt lgkmcnt(0)")
    e("s_barrier")
    stamp()
    e(f"s_cmp_ge_u32 s{s_sw}, 2")
    e("s_cbranch_scc1 L_sdone")
    R = Vf
    for i in range(4): e(f"ds_read_b128 {vr(R+4*i,4)}, v{vSr} offset:{L_SP+1024*i}")
    e("s_waitcnt lgkmcnt(2)")
    for r in range(4): e(f"v_add_f32 v{R+r}, v{R+r}, v{R+4+r}")
    e("s_waitcnt lgkmcnt(0)")
    for r in range(4): e(f"v_add_f32 v{R+8+r}, v{R+8+r}, v{R+12+r}")
    for r in range(4): e(f"v_add_f32 v{R+r}, v{R+r}, v{R+8+r}")
    for r in range(4): dpp("v_add_f32", R+r, R+r, R+r, "row_ror:8")
    tag4(R)
    e("s_mov_b32 exec_lo, 0x00ff00ff"); e("s_mov_b32 exec_hi, 0x00ff00ff")
    e(f"global_store_dwordx4 v{vSc}, {vr(R,4)}, {sr(sWS,2)} sc1")
    g.lab("L_sdone")
    if b6: e("s_barrier")
    stamp()
    dump_stamps(Kf)
    g.lab("L_end")
    e("s_endpgm")

    if "nows" in xp or "noaux" in xp:
        i0 = g.L.index("L_stream:")
        keep = []
        for n, l in enumerate(g.L):
            drop = False
            if n < i0:
                isdump = "offset:" in l and "global_store_dwordx4" in l and "sc1" not in l
                if ("s[40:41]" in l and ("global_" in l) and not isdump): drop = True
                if "glc" in l: drop = True
                if "noaux" in xp and ("buffer_load" in l or "global_load" in l): drop = True
            if not drop: keep.append(l)
        g.L = keep
    nv = (g.maxv + 7) // 8 * 8
    ldsb = L_K + 65536 if kdma else L_K
    hdr = open(os.path.join(os.path.dirname(os.path.abspath(__file__)), "..", "cdna_kernels", NAME + ".s.ref")).read().split("\n")
    top = [l for l in hdr if l.startswith(";") and "@launch" not in l and "Override" not in l and "grid=ceil" not in l]
    out = top + [f"; @launch grid=(256,1,1) block=({NW*64},1,1) lds={ldsb}",
        '.amdgcn_target "amdgcn-amd-amdhsa--gfx950"', ".text", f".globl {NAME}_kernel", ".p2align 8",
        f".type {NAME}_kernel,@function", f"{NAME}_kernel:"] + g.L + [
        '.section .rodata,"a"', ".p2align 6", f".amdhsa_kernel {NAME}_kernel",
        f"  .amdhsa_next_free_vgpr {nv}", "  .amdhsa_next_free_sgpr 102", f"  .amdhsa_accum_offset {nv}",
        "  .amdhsa_group_segment_fixed_size 0", "  .amdhsa_kernarg_size 104", "  .amdhsa_user_sgpr_count 2",
        "  .amdhsa_user_sgpr_kernarg_segment_ptr 1", "  .amdhsa_system_sgpr_workgroup_id_x 1", ".end_amdhsa_kernel", ""]
    return "\n".join(out)

if __name__ == "__main__":
    import argparse
    ap = argparse.ArgumentParser()
    ap.add_argument("-o", default=None)
    ap.add_argument("--diag", action="store_true")
    ap.add_argument("--opt", default="")
    a = ap.parse_args()
    kw = eval("dict(" + a.opt + ")")
    txt = gen(diag=a.diag, **kw)
    path = a.o or os.path.join(os.path.dirname(os.path.abspath(__file__)), "..", "cdna_kernels", NAME + ".s")
    open(path, "w").write(txt)
    print("wrote", path, len(txt.split("\n")), "lines", [l for l in txt.split("\n") if "next_free_vgpr" in l])
```

```python
import sys, os
NAME = "recurrent_scan__sliding_block_cached__dense_activation_squared_relu__decode"

class G:
    def __init__(self):
        self.L = []; self.nv = 0; self.maxv = 0
    def e(self, s): self.L.append("    " + s)
    def lab(self, s): self.L.append(s + ":")
    def reset(self, n): self.nv = n
    def v(self, n=1, al=1):
        if n >= 4: al = max(al, 4) if n % 4 == 0 else max(al, 2)
        elif n >= 2: al = max(al, 2)
        self.nv = (self.nv + al - 1) // al * al
        r = self.nv; self.nv += n
        self.maxv = max(self.maxv, self.nv)
        return r

def vr(b, n): return f"v[{b}:{b+n-1}]"
def sr(b, n): return f"s[{b}:{b+n-1}]"

QBASE = 0x1000
HBASE = QBASE + 0x40000
ABASE = HBASE + 0x20000
MLBASE = ABASE + 0x40000
IDBASE = MLBASE + 0x1000
FIN = IDBASE + 0x1000
BIN = FIN + 0x40000
DIAG = 0x400000
L_Q = 0; L_FL = 512; L_ML = 640; L_OP = 1024; OPS = 544; L_SP = 5632; SPS = 1024; L_K = 16384
NW = 10

SCALE = 0x3DB504F3
LOG2E = 0x3FB8AA3B
EPS = 0x3727C5AC

def gen(diag=False, fK="nt", fV="nt", fW="nt", kdma=True, bar0=True, fast=True, prio=True, pf=True, gate=True, vd=4, slp=1, perm=True, fmap=True, sched=None, bp=1, xp='', early=0, wol=1, burst=True, tlb=False, mlop=True, top=2, rd=0, b4b=True, b6=True, al=1, gw=False, idg=True, flate=0, bsl=4, amp=None, pfn=8, spin=20000):
    g = G(); e = g.e
    fl = lambda f: (" " + f) if f else ""
    fK, fV, fW = fl(fK), fl(fV), fl(fW)
    sX, sK, sV, sWQ, sWO, sW1, sB1, sW2, sB2, sOUT, sWS = 16, 18, 20, 22, 24, 28, 30, 32, 34, 36, 40
    s_wv, s_h, s_j, s_t0, s_t1, s_E, s_cnt = 3, 4, 5, 6, 7, 8, 9
    s_j1, s_cb, s_wgi = 10, 11, 12
    s_g = 43
    sT = [44, 45, 46, 47]
    s_hi, s_scale, s_l2e, s_fast = 48, 49, 50, 51
    srdA, srdB, srdC = 52, 56, 60
    sM = [64, 66, 68, 70]
    sID = 64
    s_T, s_idw, s_ido = 26, 38, 27
    sG = 100
    ST0 = 72
    nst = [0]
    def stamp():
        if diag:
            e(f"s_memrealtime {sr(ST0+2*nst[0],2)}")
            nst[0] += 1
            assert nst[0] <= 14
    ndump = [0]
    def dump_stamps(vt):
        if not diag: return
        if amp:
            role = ndump[0]; ndump[0] += 1
            if role != amp[0]: return
            e("s_waitcnt lgkmcnt(0)")
            e(f"s_cmp_eq_u32 s{ST0+2*amp[1]}, 0")
            e("s_cbranch_scc1 L_ampd")
            e(f"s_sub_u32 s{s_t0}, s{ST0+2*amp[1]}, s{ST0}")
            e(f"s_lshl_b32 s{s_t0}, s{s_t0}, 3")
            e(f"s_add_u32 s{s_t0}, s{s_t0}, s{ST0}")
            e(f"s_add_u32 s{s_t0}, s{s_t0}, 2000")
            g.lab("L_amp")
            e(f"s_memrealtime {sr(ST0+2,2)}")
            e("s_waitcnt lgkmcnt(0)")
            e(f"s_sub_u32 s{s_t1}, s{ST0+2}, s{s_t0}")
            e(f"s_cmp_lt_i32 s{s_t1}, 0")
            e("s_cbranch_scc1 L_amp")
            g.lab("L_ampd")
            return
        e("s_mov_b64 exec, -1")
        e("s_waitcnt vmcnt(0) lgkmcnt(0)")
        e(f"s_getreg_b32 s{s_t0}, hwreg(HW_REG_XCC_ID)")
        e(f"s_getreg_b32 s{s_t1}, hwreg(HW_REG_HW_ID)")
        for i in range(14):
            src = f"s{ST0+2*i}" if i < nst[0] else "0"
            e(f"v_mov_b32 v{vt+i}, {src}")
        e(f"v_mov_b32 v{vt+14}, s{s_t0}")
        e(f"v_mov_b32 v{vt+15}, s{s_t1}")
        e(f"s_mul_i32 s{s_t0}, s2, {NW}")
        e(f"s_add_u32 s{s_t0}, s{s_t0}, s{s_wv}")
        e(f"s_lshl_b32 s{s_t0}, s{s_t0}, 6")
        e(f"s_add_u32 s{s_t0}, s{s_t0}, {DIAG}")
        e(f"v_mov_b32 v{vt+16}, s{s_t0}")
        e("s_mov_b64 exec, 1")
        for i in range(4):
            e(f"global_store_dwordx4 v{vt+16}, {vr(vt+4*i,4)}, {sr(sWS,2)} offset:{16*i}")
    def dpp(op, d, a, b, ctl):
        e(f"{op}_dpp v{d}, v{a}, v{b} {ctl} row_mask:0xf bank_mask:0xf")
    X1, X2, HM, RM = "quad_perm:[1,0,3,2]", "quad_perm:[2,3,0,1]", "row_half_mirror", "row_mirror"
    def red8(op, regs):
        for ctl in (X1, X2, HM):
            pad = max(0, 2 - (len(regs) - 1))
            if pad: e(f"s_nop {pad-1}")
            for r in regs: dpp(op, r, r, r, ctl)
    def redgrp(op, r, tmp):
        e(f"v_mov_b32 v{tmp}, v{r}"); e("s_nop 1")
        e(f"v_permlane16_swap_b32 v{r}, v{tmp}")
        e(f"{op} v{r}, v{r}, v{tmp}")
        e(f"v_mov_b32 v{tmp}, v{r}"); e("s_nop 1")
        e(f"v_permlane32_swap_b32 v{r}, v{tmp}")
        e(f"{op} v{r}, v{r}, v{tmp}")
    def rbf(d, a):
        e(f"v_cvt_pk_bf16_f32 v{d}, v{a}, v{a}")
        e(f"v_and_b32 v{d}, s{s_hi}, v{d}")
    def rbf2(a, b, tmp):
        e(f"v_cvt_pk_bf16_f32 v{tmp}, v{a}, v{b}")
        e(f"v_lshlrev_b32 v{a}, 16, v{tmp}")
        e(f"v_and_b32 v{b}, s{s_hi}, v{tmp}")
    def mfma(d, a, b, c):
        cc = "0" if c is None else vr(c, 4)
        e(f"v_mfma_f32_16x16x32_bf16 {vr(d,4)}, {vr(a,4)}, {vr(b,4)}, {cc}")
    def srd(d, p, n):
        e(f"s_mov_b32 s{d}, s{p}"); e(f"s_mov_b32 s{d+1}, s{p+1}")
        e(f"s_mov_b32 s{d+2}, {n}"); e(f"s_mov_b32 s{d+3}, 0x20000")

    g.reset(1)
    lane, m, kg = g.v(), g.v(), g.v()
    msk = g.v(4)
    vFF = g.v()
    t0, t1, t2, t3 = g.v(), g.v(), g.v(), g.v()
    bl, m16, vPd = g.v(), g.v(), g.v()
    common_end = g.nv
    e(f"s_load_dwordx16 {sr(16,16)}, s[0:1], 0")
    if pf == 2:
        e(f"s_cmp_ge_u32 s2, {pfn}")
        e("s_cbranch_scc1 L_npf")
        e(f"s_getpc_b64 {sr(sG,2)}")
        g.lab("L_pc")
        e(f"v_lshlrev_b32 v{vFF}, 7, v0")
        e(f"v_min_u32 v{vFF}, L_end-L_pc, v{vFF}")
        e(f"global_load_dword v{vPd}, v{vFF}, {sr(sG,2)}")
        g.lab("L_npf")
    e(f"s_load_dwordx8 {sr(32,8)}, s[0:1], 64")
    e(f"s_load_dwordx2 {sr(sWS,2)}, s[0:1], 96")
    stamp()
    e(f"v_lshrrev_b32 v{t0}, 6, v0")
    e("s_cmpk_ge_u32 s2, 256")
    e("s_cbranch_scc1 L_end")
    e(f"v_readfirstlane_b32 s{s_wv}, v{t0}")
    e(f"v_and_b32 v{m}, 15, v0")
    e(f"v_bfe_u32 v{kg}, v0, 4, 2")
    e(f"s_lshr_b32 s{s_t1}, s2, 6")
    e(f"s_lshl_b32 s{s_h}, s{s_t1}, 3")
    e(f"s_and_b32 s{s_t0}, s2, 7")
    e(f"s_add_u32 s{s_h}, s{s_h}, s{s_t0}")
    e(f"s_bfe_u32 s{s_j}, s2, 0x30003")
    e(f"v_lshlrev_b32 v{m16}, 4, v{m}")
    e(f"s_cmp_ge_u32 s{s_wv}, 2")
    e("s_cbranch_scc1 L_stream")
    def blcalc():
        e(f"v_and_b32 v{lane}, 63, v0")
        e(f"v_and_b32 v{bl}, 8, v0")
        e(f"v_lshlrev_b32 v{bl}, 7, v{bl}")
    def late_consts():
        if diag:
            for i in range(nst[0], 14): e(f"s_mov_b32 s{ST0+2*i}, 0")
        e(f"s_and_b32 s{s_j1}, s{s_j}, 1")
        e(f"s_lshr_b32 s{s_cb}, s{s_j}, 1")
        e(f"s_lshl_b32 s{s_wgi}, s{s_h}, 3")
        e(f"s_add_u32 s{s_wgi}, s{s_wgi}, s{s_j}")
        e(f"s_mov_b32 s{s_hi}, 0xffff0000")
        e(f"s_mov_b32 s{s_scale}, {SCALE:#x}")
        e(f"s_mov_b32 s{s_l2e}, {LOG2E:#x}")

    def masks_and_tags(tags=True):
        e(f"v_bfe_u32 v{t0}, v{m}, 1, 2")
        e(f"v_and_b32 v{t1}, 1, v{m}")
        e(f"v_lshlrev_b32 v{t1}, 4, v{t1}")
        e(f"v_mov_b32 v{t2}, 0xffff")
        e(f"v_lshlrev_b32 v{t1}, v{t1}, v{t2}")
        for i in range(4): e(f"v_cmp_eq_u32 {sr(sM[i],2)}, {i}, v{t0}")
        e(f"v_mov_b32 v{vFF}, 0xffffff00")
        for i in range(4): e(f"v_cndmask_b32 v{msk+i}, 0, v{t1}, {sr(sM[i],2)}")
        if tags: do_tags()
    def do_tags():
        e("s_waitcnt lgkmcnt(0)")
        e(f"s_mul_i32 s{s_t0}, s{s_E}, 0x9e3779b1")
        e(f"s_add_u32 s{s_t0}, s{s_t0}, 0x7f4a7c15")
        e(f"s_add_u32 s{sT[0]}, s{s_E}, 1")
        e(f"s_and_b32 s{sT[0]}, s{sT[0]}, 0xff")
        e(f"s_bfe_u32 s{sT[1]}, s{s_t0}, 0x80008")
        e(f"s_bfe_u32 s{sT[2]}, s{s_t0}, 0x80010")
        e(f"s_bfe_u32 s{sT[3]}, s{s_t0}, 0x80018")
        e(f"s_and_b32 s{s_T}, s{s_t0}, 0xffffff00")
        e(f"s_or_b32 s{s_T}, s{s_T}, s{sT[0]}")
        e(f"s_getreg_b32 s{s_t1}, hwreg(HW_REG_XCC_ID, 0, 4)")
        e(f"s_and_b32 s{s_idw}, s{s_T}, -16")
        e(f"s_or_b32 s{s_idw}, s{s_idw}, s{s_t1}")
        e(f"s_mov_b32 s{s_idw+1}, s{s_idw}")
        e(f"s_lshl_b32 s{s_ido}, s{s_h}, 7")
        e(f"s_add_u32 s{s_ido}, s{s_ido}, {IDBASE}")
    def id_issue():
        e(f"s_load_dwordx8 {sr(sID,8)}, {sr(sWS,2)}, s{s_ido} glc")
    def id_check():
        for i in range(4): e(f"s_xor_b64 {sr(sID+2*i,2)}, {sr(sID+2*i,2)}, {sr(s_idw,2)}")
        e(f"s_or_b64 {sr(sID,2)}, {sr(sID,2)}, {sr(sID+2,2)}")
        e(f"s_or_b64 {sr(sID+4,2)}, {sr(sID+4,2)}, {sr(sID+6,2)}")
        e(f"s_or_b64 {sr(sID,2)}, {sr(sID,2)}, {sr(sID+4,2)}")
        e(f"s_cselect_b32 s{s_fast}, 0, 1")
    def id_gate(lab, vaddr, d, mask):
        e(f"s_movk_i32 s{s_t1}, 400")
        g.lab(lab)
        id_issue()
        e(f"s_sub_u32 s{s_t1}, s{s_t1}, 1")
        e("s_waitcnt lgkmcnt(0)")
        e(f"s_cbranch_scc1 {lab}_s")
        id_check()
        e(f"s_or_b32 s{sID}, s{sID}, s{sID+1}")
        e(f"s_lshr_b32 s{sID}, s{sID}, 4")
        e(f"s_cbranch_scc1 {lab}")
        e(f"s_cmp_eq_u32 s{s_fast}, 1")
        e(f"s_cbranch_scc1 {lab}_f")
        g.lab(f"{lab}_s")
        e(f"s_mov_b32 s{s_fast}, 0")
        if mask: e(f"s_mov_b32 exec_lo, {mask}"); e(f"s_mov_b32 exec_hi, {mask}")
        e(f"global_store_dwordx4 v{vaddr}, {vr(d,4)}, {sr(sWS,2)} sc1")
        if mask: e("s_mov_b64 exec, -1")
        g.lab(f"{lab}_f")
    def smem_gate(lab, base, shift, stride, off, tagi):
        if not gate: return
        e(f"s_lshl_b32 s{s_t0}, s{s_h}, {shift}")
        e(f"s_add_u32 s{s_t0}, s{s_t0}, {base+off}")
        e(f"s_add_u32 s{sG}, s{sWS}, s{s_t0}")
        e(f"s_addc_u32 s{sG+1}, s{sWS+1}, 0")
        e(f"s_movk_i32 s{s_t1}, 200")
        if gw: e(f"s_waitcnt vmcnt({gw})")
        g.lab(lab)
        for p in range(8): e(f"s_load_dword s{sID+p}, {sr(sG,2)}, {p*stride} glc")
        e(f"s_sub_u32 s{s_t1}, s{s_t1}, 1")
        e(f"s_cbranch_scc1 {lab}_to")
        e("s_waitcnt lgkmcnt(0)")
        for p in range(8): e(f"s_xor_b32 s{sID+p}, s{sID+p}, s{sT[tagi]}")
        e(f"s_or_b64 {sr(sID,2)}, {sr(sID,2)}, {sr(sID+2,2)}")
        e(f"s_or_b64 {sr(sID+4,2)}, {sr(sID+4,2)}, {sr(sID+6,2)}")
        e(f"s_or_b64 {sr(sID,2)}, {sr(sID,2)}, {sr(sID+4,2)}")
        e(f"s_or_b32 s{sID}, s{sID}, s{sID+1}")
        e(f"s_and_b32 s{sID}, s{sID}, 0xff")
        e(f"s_cbranch_scc1 {lab}")
        g.lab(f"{lab}_to")
        e("s_waitcnt lgkmcnt(0)")
    def afrag(dst, val):
        e(f"v_cvt_pk_bf16_f32 v{dst+3}, v{val}, v{val}")
        for i in range(4): e(f"v_and_b32 v{dst+i}, v{msk+i}, v{dst+3}")
    def tag4(d):
        for i in range(4): e(f"v_and_or_b32 v{d+i}, v{d+i}, v{vFF}, s{sT[i]}")
    def poll_tail(acc, lab, sleep=0):
        e(f"v_and_b32 v{acc}, 0xff, v{acc}")
        e(f"v_cmp_ne_u32 vcc, 0, v{acc}")
        e(f"s_cbranch_vccz {lab}_ok")
        if sleep: e(f"s_sleep {sleep}")
        e(f"s_sub_u32 s{s_cnt}, s{s_cnt}, 1")
        e(f"s_cmp_lg_u32 s{s_cnt}, 0")
        e(f"s_cbranch_scc1 {lab}")
        g.lab(f"{lab}_ok")
    npub = [0]
    def publish(vaddr, d, slow=False, n4=4):
        if slow or not fast:
            e(f"global_store_dwordx{n4} v{vaddr}, {vr(d,n4)}, {sr(sWS,2)} sc1"); return
        n = npub[0]; npub[0] += 1
        e(f"s_cmp_eq_u32 s{s_fast}, 0")
        e(f"s_cbranch_scc1 L_ps{n}")
        e(f"global_store_dwordx{n4} v{vaddr}, {vr(d,n4)}, {sr(sWS,2)}")
        e(f"s_branch L_pd{n}")
        g.lab(f"L_ps{n}")
        e(f"global_store_dwordx{n4} v{vaddr}, {vr(d,n4)}, {sr(sWS,2)} sc1")
        g.lab(f"L_pd{n}")
    def sum_n(base, n):
        step = 1
        while step < n:
            for i in range(0, n, 2*step):
                for r in range(4):
                    e(f"v_add_f32 v{base+4*i+r}, v{base+4*i+r}, v{base+4*(i+step)+r}")
            step *= 2
    def tagpair(da, db, cond):
        e(f"v_mov_b32 v{t0}, s{sT[0]}"); e(f"v_mov_b32 v{t1}, s{sT[1]}")
        e(f"v_mov_b32 v{t2}, s{sT[2]}"); e(f"v_mov_b32 v{t3}, s{sT[3]}")
        e(f"v_cndmask_b32 v{da}, v{t0}, v{t2}, {sr(cond,2)}")
        e(f"v_cndmask_b32 v{db}, v{t1}, v{t3}, {sr(cond,2)}")

    vX, vXr, vW, vPub, vl16, c2, vPf = [g.v() for _ in range(7)]
    xd = g.v(8); xl = g.v(8); xr = g.v(8)
    W = g.v(64); AF = g.v(8); D = g.v(4)
    aux_end = g.nv
    s_str, s_off, s_lim = 13, 14, 15
    if prio: e("s_setprio 3")
    e(f"s_lshl_b32 s{s_g}, s{s_t0}, 2")
    e(f"s_add_u32 s{s_g}, s{s_g}, s{s_t1}")
    if "noffn" in xp: e(f"s_mov_b32 s{s_g}, 31")
    blcalc()
    if pf == 1:
        e(f"s_getpc_b64 {sr(sG,2)}")
        g.lab("L_pc")
        e(f"s_lshr_b32 s{s_t0}, s2, 3")
        e(f"s_lshl_b32 s{s_t0}, s{s_t0}, 9")
        e(f"s_lshl_b32 s{s_t1}, s{s_wv}, 8")
        e(f"s_add_u32 s{s_t0}, s{s_t0}, s{s_t1}")
        e(f"v_lshl_add_u32 v{vPf}, v{lane}, 7, s{s_t0}")
        e(f"v_min_u32 v{vPf}, L_end-L_pc, v{vPf}")
        e("s_mov_b64 exec, 3")
        e(f"global_load_dword v{vPf}, v{vPf}, {sr(sG,2)}")
        e("s_mov_b64 exec, -1")
    e(f"v_lshlrev_b32 v{t0}, 2, v{lane}")
    e(f"v_mov_b32 v{t1}, 0")
    e(f"ds_write_b32 v{t0}, v{t1} offset:{L_FL}")
    e(f"s_movk_i32 s{s_str}, 2752")
    e(f"s_movk_i32 s{s_t1}, 96")
    e(f"s_cmp_eq_u32 s{s_wv}, 0")
    e(f"s_cmovk_i32 s{s_str}, 8192")
    e(f"s_cmovk_i32 s{s_t1}, 256")
    e(f"s_cselect_b32 s{s_lim}, s{s_h}, s{s_g}")
    e(f"s_lshl_b32 s{srdA+2}, s{s_str}, 9")
    e(f"s_mul_i32 s{s_t1}, s{s_t1}, s{s_lim}")
    e(f"s_mul_i32 s{s_lim}, s{s_g}, 6")
    e(f"s_sub_i32 s{s_lim}, 172, s{s_lim}")
    e(f"s_min_i32 s{s_lim}, s{s_lim}, 6")
    e(f"s_cmp_eq_u32 s{s_wv}, 0")
    e(f"s_cselect_b32 s{s_lim}, 16, s{s_lim}")
    e(f"s_mov_b32 s{srdA+3}, 0x20000")
    e(f"v_and_b32 v{t0}, 7, v0")
    e(f"v_lshl_add_u32 v{vX}, v{t0}, 5, v{bl}")
    e(f"v_lshl_add_u32 v{vX}, v{kg}, 8, v{vX}")
    e(f"s_lshl_b32 s{s_t0}, s{s_j}, 6")
    e(f"v_lshl_add_u32 v{t1}, v{kg}, 4, s{s_t0}")
    e(f"v_lshl_add_u32 v{vXr}, v{t1}, 1, v{bl}")
    e(f"v_mul_u32_u24 v{vW}, s{s_str}, v{t1}")
    e(f"v_add3_u32 v{vW}, v{vW}, v{m16}, s{s_t1}")
    e(f"v_cmp_gt_i32 vcc, s{s_lim}, v{m}")
    e(f"v_bfrev_b32 v{t2}, 1")
    e(f"s_mov_b32 s{s_off}, 0")
    e(f"s_cmp_eq_u32 s{s_wv}, 0")
    e(f"v_cndmask_b32 v{vW}, v{t2}, v{vW}, vcc")
    e("s_waitcnt lgkmcnt(0)")
    e(f"s_cselect_b32 s{srdA}, s{sWQ}, s{sW1}")
    e(f"s_cselect_b32 s{srdA+1}, s{sWQ+1}, s{sW1+1}")
    e(f"s_load_dword s{s_E}, {sr(sWS,2)}, 0")
    stamp()
    e(f"global_load_dwordx4 {vr(xd,4)}, v{vX}, {sr(sX,2)}")
    e(f"global_load_dwordx4 {vr(xd+4,4)}, v{vX}, {sr(sX,2)} offset:16")
    e(f"global_load_dwordx4 {vr(xr,4)}, v{vXr}, {sr(sX,2)}")
    e(f"global_load_dwordx4 {vr(xr+4,4)}, v{vXr}, {sr(sX,2)} offset:16")
    for t in range(16):
        e(f"buffer_load_dwordx4 {vr(W+4*t,4)}, v{vW}, {sr(srdA,4)}, s{s_off} offen{fW}")
        if t < 15: e(f"s_add_u32 s{s_off}, s{s_off}, s{s_str}")
    e("s_barrier")
    stamp()
    late_consts()
    e(f"v_lshlrev_b32 v{vl16}, 4, v{lane}")
    e(f"v_and_b32 v{t1}, 1, v{kg}")
    e(f"v_lshl_add_u32 v{c2}, v{m}, 1, v{t1}")
    e(f"s_cmp_eq_u32 s{s_wv}, 0")
    e("s_cbranch_scc0 L_fx")
    vFo, vB2o, xo, b2v, gv, vIn, vQp, vQw = [g.v() for _ in range(8)]
    vSc, vHpa, vHpb, vTa, vTb, b1b = [g.v() for _ in range(6)]
    b1a = g.v(2); w2 = g.v(24)
    s_fr = 42
    e(f"s_lshl_b32 s{s_t0}, s{s_wgi}, 10")
    e(f"s_add_u32 s{s_t0}, s{s_t0}, {QBASE}")
    e(f"v_add_u32 v{vPub}, s{s_t0}, v{vl16}")
    e("s_branch L_ln")
    g.lab("L_fx")
    if tlb:
        e(f"s_lshl_b32 s{s_t0}, s{s_h}, 20")
        e(f"s_add_u32 s{s_t0}, s{s_t0}, {3072*256}")
        e(f"v_lshl_add_u32 v{t0}, v{lane}, 25, s{s_t0}")
        e(f"s_lshl_b32 s{s_t0}, s{s_h}, 17")
        e(f"v_mov_b32 v{t1}, s{s_t0}")
        e(f"v_mov_b32 v{t2}, {QBASE}")
        e("s_mov_b64 exec, 3")
        e(f"global_load_dword v{vFo}, v{t0}, {sr(sV,2)}")
        e("s_mov_b64 exec, 1")
        e(f"global_load_dword v{vB2o}, v{t1}, {sr(sWO,2)}")
        e(f"global_load_dword v{xo}, v{t2}, {sr(sW2,2)}")
        e(f"global_load_dword v{b2v}, v{t2}, {sr(sWS,2)} offset:-64")
        e("s_mov_b64 exec, -1")
    e(f"v_lshl_add_u32 v{vPub}, v{kg}, 7, v{m16}")
    e(f"s_lshl_b32 s{s_t0}, s{s_wgi}, 9")
    e(f"s_add_u32 s{s_t0}, s{s_t0}, {HBASE}")
    e(f"v_add_u32 v{vPub}, s{s_t0}, v{vPub}")
    g.lab("L_ln")
    masks_and_tags(False)
    e("s_waitcnt vmcnt(18)")
    stamp()
    for i in range(8):
        e(f"v_lshlrev_b32 v{xl+i}, 16, v{xd+i}")
        e(f"v_and_b32 v{xd+i}, s{s_hi}, v{xd+i}")
    e(f"v_add_f32 v{t0}, v{xl}, v{xd}")
    e(f"v_add_f32 v{t1}, v{xl+1}, v{xd+1}")
    for i in range(2, 8, 2):
        e(f"v_add_f32 v{t0}, v{t0}, v{xl+i}")
        e(f"v_add_f32 v{t1}, v{t1}, v{xl+i+1}")
        e(f"v_add_f32 v{t0}, v{t0}, v{xd+i}")
        e(f"v_add_f32 v{t1}, v{t1}, v{xd+i+1}")
    e(f"v_add_f32 v{t0}, v{t0}, v{t1}")
    red8("v_add_f32", [t0]); redgrp("v_add_f32", t0, t1)
    e(f"v_mul_f32 v{t0}, 0x3b000000, v{t0}")
    for i in range(8):
        e(f"v_sub_f32 v{xl+i}, v{xl+i}, v{t0}")
        e(f"v_sub_f32 v{xd+i}, v{xd+i}, v{t0}")
    e(f"v_mul_f32 v{t1}, v{xl}, v{xl}")
    e(f"v_mul_f32 v{t2}, v{xd}, v{xd}")
    for i in range(1, 8):
        e(f"v_fmac_f32 v{t1}, v{xl+i}, v{xl+i}")
        e(f"v_fmac_f32 v{t2}, v{xd+i}, v{xd+i}")
    e(f"v_add_f32 v{t1}, v{t1}, v{t2}")
    red8("v_add_f32", [t1]); redgrp("v_add_f32", t1, t2)
    e(f"v_mul_f32 v{t1}, 0x3b000000, v{t1}")
    rbf2(t0, t1, t2)
    e(f"v_add_f32 v{t1}, {EPS:#x}, v{t1}")
    rbf(t1, t1)
    e(f"v_sqrt_f32 v{t1}, v{t1}")
    e("s_nop 0")
    rbf(t1, t1)
    e(f"v_rcp_f32 v{t1}, v{t1}")
    e("s_waitcnt vmcnt(16)")
    for i in range(8):
        e(f"v_lshlrev_b32 v{xl+i}, 16, v{xr+i}")
        e(f"v_and_b32 v{xd+i}, s{s_hi}, v{xr+i}")
        e(f"v_sub_f32 v{xl+i}, v{xl+i}, v{t0}")
        e(f"v_sub_f32 v{xd+i}, v{xd+i}, v{t0}")
        rbf2(xl+i, xd+i, t2)
        e(f"v_mul_f32 v{xl+i}, v{xl+i}, v{t1}")
        e(f"v_mul_f32 v{xd+i}, v{xd+i}, v{t1}")
    stamp()
    val = lambda t: (xl if t % 2 == 0 else xd) + t // 2
    afrag(AF, val(0))
    for t in range(16):
        if t < 15: afrag(AF + 4*((t+1) % 2), val(t+1))
        else: e("s_nop 1")
        if t % 4 == 0: e(f"s_waitcnt vmcnt({12 - t})")
        mfma(D, AF + 4*(t % 2), W + 4*t, None if t == 0 else D)
    stamp()
    do_tags()
    tag4(D)
    e(f"s_mov_b32 s{s_cnt}, {spin}")
    e(f"s_cmp_eq_u32 s{s_wv}, 0")
    e("s_cbranch_scc0 L_f2")
    nst_split = nst[0]
    P = W
    if idg: e(f"global_store_dwordx4 v{vPub}, {vr(D,4)}, {sr(sWS,2)}")
    else: publish(vPub, D, True)
    stamp()
    e(f"s_lshl_b32 s{s_t0}, s{s_j}, 2")
    e(f"s_add_u32 s{s_t0}, s{s_t0}, s{s_ido}")
    e(f"v_mov_b32 v{t0}, s{s_t0}")
    e(f"v_mov_b32 v{t1}, s{s_idw}")
    e("s_mov_b64 exec, 1")
    e(f"global_store_dword v{t0}, v{t1}, {sr(sWS,2)} sc1")
    e("s_mov_b64 exec, -1")
    vW2a, vW2b = vX, vXr
    vI = g.v(4)
    e(f"s_mul_i32 s{s_fr}, s{s_g}, 48")
    e(f"s_lshl_b32 s{s_t0}, s{s_j1}, 2")
    e(f"s_add_u32 s{s_fr}, s{s_fr}, s{s_t0}")
    e(f"s_lshl_b32 s{s_t0}, s{s_fr}, 10")
    e(f"s_lshl_b32 s{s_t1}, s{s_cb}, 8")
    e(f"s_add_u32 s{s_t0}, s{s_t0}, s{s_t1}")
    e(f"v_lshl_add_u32 v{vW2a}, v{kg}, 13, v{m16}")
    e(f"v_add_u32 v{vW2a}, s{s_t0}, v{vW2a}")
    e(f"v_and_b32 v{t1}, 1, v{kg}")
    e(f"v_cmp_eq_u32 {sr(sM[0],2)}, 1, v{t1}")
    e(f"v_lshrrev_b32 v{t0}, 1, v{kg}")
    e(f"v_lshlrev_b32 v{t3}, 1, v{t1}")
    e(f"v_lshl_add_u32 v{t3}, v{t0}, 3, v{t3}")
    e(f"s_add_u32 s{s_t0}, s{s_t0}, {32*1024}")
    e(f"v_lshl_add_u32 v{vW2b}, v{t3}, 10, v{m16}")
    e(f"v_add_u32 v{vW2b}, s{s_t0}, v{vW2b}")
    srd(srdB, sW2, 1376*1024); srd(srdC, sB1, 2752)
    for t in range(4):
        e(f"buffer_load_dwordx4 {vr(w2+4*t,4)}, v{vW2a}, {sr(srdB,4)}, 0 offen offset:{t*1024}{fW}")
    for t in range(2):
        e(f"buffer_load_dwordx4 {vr(w2+16+4*t,4)}, v{vW2b}, {sr(srdB,4)}, 0 offen offset:{t*1024}{fW}")
    e(f"s_lshl_b32 s{s_t0}, s{s_fr}, 1")
    e(f"v_lshl_add_u32 v{t2}, v{kg}, 4, s{s_t0}")
    e(f"v_lshl_add_u32 v{t3}, v{t3}, 1, s{s_t0}")
    e(f"buffer_load_dwordx2 {vr(b1a,2)}, v{t2}, {sr(srdC,4)}, 0 offen")
    e(f"buffer_load_dword v{b1b}, v{t3}, {sr(srdC,4)}, 0 offen offset:64")
    s_c, s_k = 13, 14
    e(f"s_lshl_b32 s{s_c}, s{s_h}, 1")
    e(f"s_add_u32 s{s_c}, s{s_c}, s{s_j1}")
    e(f"s_and_b32 s{s_k}, s{s_c}, 15")
    e(f"v_lshlrev_b32 v{t1}, 2, v{t1}")
    e(f"v_and_or_b32 v{t1}, v{kg}, 2, v{t1}")
    e(f"v_and_b32 v{t2}, 3, v{lane}")
    e(f"v_lshl_add_u32 v{t1}, v{t2}, 4, v{t1}")
    e(f"s_lshr_b32 s{s_t0}, s{s_c}, 4")
    e(f"s_lshl_b32 s{s_t0}, s{s_t0}, 8")
    e(f"s_and_b32 s{s_t1}, s{s_k}, 3")
    e(f"s_lshl_b32 s{s_t1}, s{s_t1}, 6")
    e(f"s_add_u32 s{s_t0}, s{s_t0}, s{s_t1}")
    e(f"s_and_b32 s{s_t1}, s{s_k}, 4")
    e(f"s_lshl_b32 s{s_t1}, s{s_t1}, 1")
    e(f"s_add_u32 s{s_t0}, s{s_t0}, s{s_t1}")
    e(f"v_add_u32 v{vB2o}, s{s_t0}, v{t1}")
    e(f"s_and_b32 s{s_t1}, s{s_k}, 8")
    e(f"s_lshl_b32 s{s_t1}, s{s_t1}, 7")
    e(f"v_add_u32 v{vFo}, s{s_t1}, v{vB2o}")
    e(f"global_load_ushort v{xo}, v{vFo}, {sr(sX,2)}")
    e(f"global_load_ushort v{b2v}, v{vB2o}, {sr(sB2,2)}")
    e(f"s_lshr_b32 s{s_t0}, s{s_c}, 4")
    e(f"s_lshl_b32 s{s_t0}, s{s_t0}, 16")
    e(f"s_lshl_b32 s{s_t1}, s{s_k}, 6")
    e(f"s_add_u32 s{s_t0}, s{s_t0}, s{s_t1}")
    e(f"s_add_u32 s{s_t0}, s{s_t0}, {FIN}")
    e(f"v_lshl_add_u32 v{vI}, v{t2}, 4, s{s_t0}")
    e(f"v_lshrrev_b32 v{t2}, 2, v{lane}")
    e(f"v_lshl_add_u32 v{vI}, v{t2}, 10, v{vI}")
    for i in range(1, 4): e(f"v_add_u32 v{vI+i}, {i*16384}, v{vI}")
    e(f"s_lshl_b32 s{s_t1}, s{s_wgi}, 10")
    e(f"s_add_u32 s{s_t1}, s{s_t1}, {ABASE}")
    e(f"v_lshl_add_u32 v{vPf}, v{lane}, 7, s{s_t1}")
    e("s_mov_b64 exec, 0xff")
    if "npt" not in xp: e(f"global_load_dword v{vPf}, v{vPf}, {sr(sWS,2)} sc1")
    e("s_mov_b64 exec, -1")
    tagpair(vTa, vTb, sM[0])
    e(f"s_lshl_b32 s{s_t0}, s{s_h}, 13")
    e(f"s_add_u32 s{s_t0}, s{s_t0}, {QBASE+4096}")
    e(f"v_add_u32 v{vQp}, s{s_t0}, v{vl16}")
    e(f"v_lshrrev_b32 v{t1}, 1, v{kg}")
    e(f"v_lshlrev_b32 v{vQw}, 3, v{c2}")
    e(f"v_lshl_add_u32 v{vQw}, v{t1}, 8, v{vQw}")
    e(f"s_lshl_b32 s{s_t0}, s{s_cb}, 16")
    e(f"s_lshl_b32 s{s_t1}, s{s_c}, 10")
    e(f"s_add_u32 s{s_t0}, s{s_t0}, s{s_t1}")
    e(f"s_add_u32 s{s_t0}, s{s_t0}, {FIN}")
    e(f"v_add_u32 v{vSc}, s{s_t0}, v{vl16}")
    e(f"v_and_b32 v{t0}, 7, v{m}")
    e(f"v_lshrrev_b32 v{t2}, 2, v{bl}")
    e(f"v_lshl_add_u32 v{t2}, v{t0}, 9, v{t2}")
    e(f"s_lshl_b32 s{s_t0}, s{s_h}, 12")
    e(f"s_lshl_b32 s{s_t1}, s{s_j1}, 7")
    e(f"s_add_u32 s{s_t0}, s{s_t0}, s{s_t1}")
    e(f"s_add_u32 s{s_t0}, s{s_t0}, {HBASE}")
    e(f"v_add_u32 v{t2}, s{s_t0}, v{t2}")
    e(f"v_lshl_add_u32 v{vHpa}, v{kg}, 4, v{t2}")
    e(f"v_lshl_add_u32 v{vHpb}, v{kg}, 3, v{t2}")
    e(f"v_mov_b32 v{t3}, 0")
    e(f"v_mov_b32 v{t2}, 1")
    if idg: id_gate("L_gq", vPub, D, None)
    else: smem_gate("L_gq", QBASE, 13, 1024, 1020, 3)
    stamp()
    hp = xl; AF6 = W + 32
    def hloads(sc=" sc1"):
        if "nH" in xp:
            e(f"global_load_dword v{hp}, v{t3}, {sr(sX,2)}"); e(f"global_load_dword v{hp}, v{t3}, {sr(sX,2)}"); return
        e(f"global_load_dwordx4 {vr(hp,4)}, v{vHpa}, {sr(sWS,2)}{sc}")
        e(f"global_load_dwordx2 {vr(hp+4,2)}, v{vHpb}, {sr(sWS,2)} offset:64{sc}")
    g.lab("L_pq")
    for p in range(8):
        e(f"global_load_dwordx4 {vr(P+4*p,4)}, v{vQp}, {sr(sWS,2)} offset:{p*1024-4096} sc1")
    hloads("")
    for p in range(8):
        e(f"s_waitcnt vmcnt({9-p})")
        for r in range(4): e(f"v_xor_b32 v{P+4*p+r}, s{sT[r]}, v{P+4*p+r}")
        if p == 0: e(f"v_or_b32 v{t0}, v{P}, v{P+1}")
        else: e(f"v_or3_b32 v{t0}, v{t0}, v{P+4*p}, v{P+4*p+1}")
        e(f"v_or3_b32 v{t0}, v{t0}, v{P+4*p+2}, v{P+4*p+3}")
    poll_tail(t0, "L_pq")
    stamp()
    sum_n(P, 8)
    e(f"v_cvt_pk_bf16_f32 v{P}, v{P}, v{P+1}")
    e(f"v_cvt_pk_bf16_f32 v{P+1}, v{P+2}, v{P+3}")
    e(f"ds_write_b64 v{vQw}, {vr(P,2)} offset:{L_Q}")
    e("s_waitcnt lgkmcnt(0)")
    e("s_mov_b64 exec, 1")
    e(f"ds_write_b32 v{t3}, v{t2} offset:{L_FL}")
    e("s_mov_b64 exec, -1")
    if not idg: id_issue()
    e(f"s_mov_b32 s{s_cnt}, {spin}")
    e("s_branch L_ph_c")
    g.lab("L_ph")
    hloads()
    g.lab("L_ph_c")
    e("s_waitcnt vmcnt(0)")
    for r in range(4): e(f"v_xor_b32 v{hp+r}, s{sT[r]}, v{hp+r}")
    e(f"v_xor_b32 v{hp+4}, v{vTa}, v{hp+4}")
    e(f"v_xor_b32 v{hp+5}, v{vTb}, v{hp+5}")
    e(f"v_or_b32 v{t0}, v{hp+4}, v{hp+5}")
    for i in range(0, 4, 2): e(f"v_or3_b32 v{t0}, v{t0}, v{hp+i}, v{hp+i+1}")
    if "nH" in xp: e(f"v_mov_b32 v{t0}, 0")
    poll_tail(t0, "L_ph")
    red8("v_add_f32", [hp+i for i in range(6)])
    for i in range(0, 6, 2): rbf2(hp+i, hp+i+1, t0)
    bsrc = [b1a, b1a+1, b1b]
    for i in range(3):
        e(f"v_lshlrev_b32 v{t0}, 16, v{bsrc[i]}")
        e(f"v_and_b32 v{t1}, s{s_hi}, v{bsrc[i]}")
        e(f"v_add_f32 v{hp+2*i}, v{hp+2*i}, v{t0}")
        e(f"v_add_f32 v{hp+2*i+1}, v{hp+2*i+1}, v{t1}")
    for i in range(0, 6, 2): rbf2(hp+i, hp+i+1, t0)
    for i in range(6): e(f"v_max_f32 v{hp+i}, 0, v{hp+i}")
    for i in range(6): e(f"v_mul_f32 v{hp+i}, v{hp+i}, v{hp+i}")
    for i in range(6): afrag(AF6+4*i, hp+i)
    e("s_nop 1")
    for i in range(6): mfma(D, AF6+4*i, w2+4*i, None if i == 0 else D)
    vMr, vOr, vMs, vZ = vX, vXr, vW, vPf
    fw = xd; MLv = xl
    e("s_nop 2")
    e(f"v_and_b32 v{vZ}, 1, v{lane}")
    e(f"v_lshlrev_b32 v{vMr}, 6, v{vZ}")
    e(f"v_lshrrev_b32 v{t0}, 1, v{lane}")
    e(f"v_mul_u32_u24 v{vOr}, {4*OPS}, v{vZ}")
    e(f"v_lshl_add_u32 v{vOr}, v{t0}, 4, v{vOr}")
    tag4(D)
    if "nF" not in xp and not flate: e(f"global_store_dwordx4 v{vSc}, {vr(D,4)}, {sr(sWS,2)} sc1")
    stamp()
    e(f"s_lshl_b32 s{s_t0}, s{s_wgi}, 4")
    e(f"s_add_u32 s{s_t0}, s{s_t0}, {MLBASE}")
    e(f"v_lshl_add_u32 v{vMs}, v{vZ}, 3, s{s_t0}")
    e(f"s_lshl_b32 s{s_t0}, s{s_h}, 13")
    e(f"s_lshl_b32 s{s_t1}, s{s_j}, {4+al}")
    e(f"s_add_u32 s{s_t0}, s{s_t0}, s{s_t1}")
    e(f"s_add_u32 s{s_t0}, s{s_t0}, {ABASE}")
    e(f"v_lshrrev_b32 v{t0}, {al}, v{lane}")
    e(f"v_lshl_add_u32 v{vPub}, v{t0}, {7+al}, s{s_t0}")
    e(f"v_and_b32 v{t0}, {(1<<al)-1}, v{lane}")
    e(f"v_lshl_add_u32 v{vPub}, v{t0}, 4, v{vPub}")
    e("s_waitcnt lgkmcnt(0)")
    if not idg: id_check()
    e(f"v_cmp_eq_u32 {sr(sM[0],2)}, 1, v{vZ}")
    tagpair(vTa, vTb, sM[0])
    e(f"v_mov_b32 v{vZ}, 0")
    e(f"v_lshlrev_b32 v{b2v}, 16, v{b2v}")
    e(f"v_lshlrev_b32 v{xo}, 16, v{xo}")
    e(f"s_mov_b32 s{s_cnt}, {spin*16}")
    g.lab("L_wm")
    for i in range(4): e(f"ds_read_b128 {vr(P+4*i,4)}, v{vMr} offset:{L_ML+16*i}")
    e("s_waitcnt lgkmcnt(0)")
    e(f"v_and_b32 v{t0}, v{P+2}, v{P+6}")
    e(f"v_and_b32 v{t1}, v{P+10}, v{P+14}")
    e(f"v_and_b32 v{t0}, v{t0}, v{t1}")
    e(f"v_cmp_ne_u32 vcc, 1, v{t0}")
    e("s_cbranch_vccz L_wm_ok")
    e("s_sleep 1")
    e(f"s_sub_u32 s{s_cnt}, s{s_cnt}, 1")
    e(f"s_cmp_lg_u32 s{s_cnt}, 0")
    e("s_cbranch_scc1 L_wm")
    g.lab("L_wm_ok")
    e(f"v_max3_f32 v{MLv}, v{P}, v{P+4}, v{P+8}")
    e(f"v_max_f32 v{MLv}, v{MLv}, v{P+12}")
    for i in range(4): e(f"v_sub_f32 v{fw+i}, v{P+4*i}, v{MLv}")
    for i in range(4): e(f"v_mul_f32 v{fw+i}, s{s_l2e}, v{fw+i}")
    for i in range(4): e(f"v_exp_f32 v{fw+i}, v{fw+i}")
    e(f"v_mul_f32 v{MLv+1}, v{fw}, v{P+1}")
    for i in range(1, 4): e(f"v_fmac_f32 v{MLv+1}, v{fw+i}, v{P+4*i+1}")
    e(f"v_and_or_b32 v{MLv}, v{MLv}, v{vFF}, v{vTa}")
    e(f"v_and_or_b32 v{MLv+1}, v{MLv+1}, v{vFF}, v{vTb}")
    e("s_mov_b64 exec, 3")
    publish(vMs, MLv, n4=2)
    e("s_mov_b64 exec, -1")
    Q = P + 16; QB = P + 32
    def inl(Q):
        for i in range(4): e(f"global_load_dwordx4 {vr(Q+4*i,4)}, v{vI+i}, {sr(sWS,2)} sc1")
    def chk(Q, extra=0):
        for i in range(4):
            e(f"s_waitcnt vmcnt({3-i+extra})")
            for r in range(4): e(f"v_xor_b32 v{Q+4*i+r}, s{sT[r]}, v{Q+4*i+r}")
            if i == 0: e(f"v_or_b32 v{t0}, v{Q}, v{Q+1}")
            else: e(f"v_or3_b32 v{t0}, v{t0}, v{Q+4*i}, v{Q+4*i+1}")
            e(f"v_or3_b32 v{t0}, v{t0}, v{Q+4*i+2}, v{Q+4*i+3}")
            if i:
                for r in range(4): e(f"v_add_f32 v{Q+r}, v{Q+r}, v{Q+4*i+r}")
    def red64(Q):
        e(f"v_permlane32_swap_b32 v{Q}, v{Q+1}")
        e(f"v_permlane32_swap_b32 v{Q+2}, v{Q+3}")
        e(f"v_add_f32 v{Q}, v{Q}, v{Q+1}")
        e(f"v_add_f32 v{Q+2}, v{Q+2}, v{Q+3}")
        e("s_nop 1")
        e(f"v_permlane16_swap_b32 v{Q}, v{Q+2}")
        e(f"v_add_f32 v{Q}, v{Q}, v{Q+2}")
        for ctl in ("row_ror:8", "row_ror:4"):
            e("s_nop 1"); dpp("v_add_f32", Q, Q, Q, ctl)
        rbf(Q, Q)
    if not flate:
        e(f"s_cmp_ge_u32 s{s_j}, 2")
        e("s_cbranch_scc1 L_nof")
        inl(Q)
        g.lab("L_nof")
    e(f"s_mov_b32 s{s_cnt}, {spin}")
    e("s_barrier")
    for i in range(4): e(f"ds_read_b128 {vr(P+4*i,4)}, v{vOr} offset:{L_OP+OPS*i}")
    e("s_waitcnt lgkmcnt(3)")
    for r in range(4): e(f"v_mul_f32 v{P+r}, v{P+r}, v{fw}")
    for i in range(1, 4):
        e(f"s_waitcnt lgkmcnt({3-i})")
        for r in range(4): e(f"v_fmac_f32 v{P+r}, v{P+4*i+r}, v{fw+i}")
    tag4(P)
    publish(vPub, P)
    stamp()
    if not flate:
        if b4b: e("s_barrier")
        e(f"s_cmp_ge_u32 s{s_j}, 2")
        e("s_cbranch_scc1 L_noep")
        s_ph = 15
        e(f"s_mov_b32 s{s_ph}, 0")
        chk(Q, 1)
        e(f"v_and_b32 v{t0}, 0xff, v{t0}")
        e(f"v_cmp_ne_u32 vcc, 0, v{t0}")
        e("s_cbranch_vccz L_pf_ok")
        e(f"s_mov_b32 s{s_ph}, 1")
        e("s_barrier")
        if b6: e("s_barrier")
        g.lab("L_pf")
        inl(Q)
        chk(Q)
        poll_tail(t0, "L_pf")
        stamp()
        for i in range(4): e(f"v_add_u32 v{vI+i}, {BIN-FIN}, v{vI+i}")
        red64(Q)
        e(f"v_add_f32 v{Q}, v{Q}, v{b2v}")
        rbf(Q, Q)
        e(f"v_mul_f32 v{t0}, s{s_l2e}, v{Q}")
        e(f"v_exp_f32 v{t0}, -v{t0}")
        e("s_nop 0")
        e(f"v_add_f32 v{t0}, 1.0, v{t0}")
        e(f"v_rcp_f32 v{t0}, v{t0}")
        e("s_nop 0")
        e(f"v_mul_f32 v{gv}, v{Q}, v{t0}")
        rbf(gv, gv)
        e(f"s_mov_b32 s{s_cnt}, {spin}")
        e(f"s_cmp_eq_u32 s{s_ph}, 1")
        e("s_cbranch_scc1 L_nb")
        e("s_barrier")
        if b6: e("s_barrier")
        g.lab("L_nb")
        inl(QB)
    else:
        if flate == 1: e(f"global_store_dwordx4 v{vSc}, {vr(D,4)}, {sr(sWS,2)} sc1")
        e("s_barrier")
        if flate == 2:
            e("s_barrier")
            e(f"global_store_dwordx4 v{vSc}, {vr(D,4)}, {sr(sWS,2)} sc1")
        e(f"s_cmp_ge_u32 s{s_j}, 2")
        e("s_cbranch_scc1 L_noep")
        vJ = w2
        for i in range(4): e(f"v_add_u32 v{vJ+i}, {BIN-FIN}, v{vI+i}")
        if flate == 1: e("s_barrier")
        e("s_barrier")
        g.lab("L_pf")
        inl(Q)
        if bsl: e(f"s_sleep {bsl}")
        for i in range(4): e(f"global_load_dwordx4 {vr(QB+4*i,4)}, v{vJ+i}, {sr(sWS,2)} sc1")
        chk(Q, 4)
        poll_tail(t0, "L_pf")
        stamp()
        for i in range(4): e(f"v_mov_b32 v{vI+i}, v{vJ+i}")
        red64(Q)
        e(f"v_add_f32 v{Q}, v{Q}, v{b2v}")
        rbf(Q, Q)
        e(f"v_mul_f32 v{t0}, s{s_l2e}, v{Q}")
        e(f"v_exp_f32 v{t0}, -v{t0}")
        e("s_nop 0")
        e(f"v_add_f32 v{t0}, 1.0, v{t0}")
        e(f"v_rcp_f32 v{t0}, v{t0}")
        e("s_nop 0")
        e(f"v_mul_f32 v{gv}, v{Q}, v{t0}")
        rbf(gv, gv)
        e(f"s_mov_b32 s{s_cnt}, {spin}")
    if bp == 1:
        e("s_branch L_pb_c")
        g.lab("L_pb")
        inl(QB)
        g.lab("L_pb_c")
        chk(QB)
        poll_tail(t0, "L_pb")
    else:
        sets = [QB, P + 48, P][:bp]
        ACC = xd
        for k in range(1, bp - 1): inl(sets[k])
        g.lab("L_pb")
        for k in range(bp):
            inl(sets[(k + bp - 1) % bp])
            Z = sets[k]; base = 4 * (bp - 1)
            for i in range(4):
                e(f"s_waitcnt vmcnt({base+3-i})")
                for r in range(4): e(f"v_xor_b32 v{Z+4*i+r}, s{sT[r]}, v{Z+4*i+r}")
                if i == 0: e(f"v_or_b32 v{t0}, v{Z}, v{Z+1}")
                else: e(f"v_or3_b32 v{t0}, v{t0}, v{Z+4*i}, v{Z+4*i+1}")
                e(f"v_or3_b32 v{t0}, v{t0}, v{Z+4*i+2}, v{Z+4*i+3}")
                if i:
                    for r in range(4): e(f"v_add_f32 v{ACC+r}, v{(Z if i == 1 else ACC)+r}, v{Z+4*i+r}")
            e(f"v_and_b32 v{t0}, 0xff, v{t0}")
            e(f"v_cmp_ne_u32 vcc, 0, v{t0}")
            e("s_cbranch_vccz L_pb_ok")
        e(f"s_sub_u32 s{s_cnt}, s{s_cnt}, 1")
        e(f"s_cmp_lg_u32 s{s_cnt}, 0")
        e("s_cbranch_scc1 L_pb")
        g.lab("L_pb_ok")
        QB = ACC
    stamp()
    red64(QB)
    e(f"v_mul_f32 v{QB}, v{QB}, v{gv}")
    rbf(QB, QB)
    e(f"v_add_f32 v{QB}, v{QB}, v{xo}")
    e(f"v_cvt_pk_bf16_f32 v{QB}, v{QB}, v{QB}")
    e("s_mov_b32 exec_lo, 0x000f000f"); e("s_mov_b32 exec_hi, 0x000f000f")
    e(f"global_store_short v{vFo}, v{QB}, {sr(sOUT,2)}")
    e("s_cmp_lg_u32 s2, 0")
    e("s_cbranch_scc1 L_noep")
    e(f"s_add_u32 s{s_t0}, s{s_E}, 1")
    e(f"v_mov_b32 v{t0}, s{s_t0}")
    e("s_mov_b64 exec, 1")
    e(f"global_store_dword v{vZ}, v{t0}, {sr(sWS,2)}")
    g.lab("L_noep")
    stamp()
    dump_stamps(w2+4)
    e("s_endpgm")
    g.lab("L_f2")
    nst[0] = nst_split
    e("s_mov_b32 exec_lo, 0x00ff00ff"); e("s_mov_b32 exec_hi, 0x00ff00ff")
    if idg:
        e(f"global_store_dwordx4 v{vPub}, {vr(D,4)}, {sr(sWS,2)}")
        id_gate("L_gh", vPub, D, None)
    else: publish(vPub, D, True)
    stamp()
    dump_stamps(W+32)
    e("s_endpgm")

    g.lab("L_stream")
    nst[0] = 1 if diag else 0
    g.reset(common_end)
    vKa = g.v(4); vKr = g.v(4)
    vV, vWo, vQr, vOw, vAp, vMp, vMw, vL, vSr, vSc, vTa, vTb, vTc, vTd, vZ, fv = [g.v() for _ in range(16)]
    mw = g.v(4); lw = mw + 1
    ml = g.v(2); op = g.v(4); op2 = g.v(4)
    s_par = 68
    qf = g.v(16); Kf = g.v(32); Vf = g.v(32); wo = g.v(8)
    D0 = g.v(4); D1 = g.v(4)
    A0 = qf; A1 = qf + 4
    s_sw, s_bw, s_kv = 13, 14, 15
    e(f"s_sub_u32 s{s_sw}, s{s_wv}, 2")
    e(f"s_lshr_b32 s{s_bw}, s{s_sw}, 2")
    e(f"s_and_b32 s{s_t0}, s{s_sw}, 3")
    e(f"s_lshl_b32 s{s_t0}, s{s_t0}, 13")
    e(f"s_lshl_b32 s{s_kv}, s{s_bw}, 25")
    e(f"s_lshl_b32 s{s_t1}, s{s_h}, 20")
    e(f"s_add_u32 s{s_kv}, s{s_kv}, s{s_t1}")
    e(f"s_add_u32 s{s_kv}, s{s_kv}, s{s_t0}")
    e(f"s_lshl_b32 s{s_t1}, s{s_j}, 15")
    e(f"s_add_u32 s{s_kv}, s{s_kv}, s{s_t1}")
    e(f"s_add_u32 s{s_kv}, s{s_kv}, {3072*256}")
    s_c2, s_cK, s_cV, s_m0b, s_so = 42, 43, 60, 61, 62
    if perm:
        e(f"s_lshl_b32 s{s_t0}, s2, 3")
        e(f"s_add_u32 s{s_t0}, s{s_t0}, s{s_sw}")
        e(f"s_mul_i32 s{s_t0}, s{s_t0}, 0x9e3779b1")
        e(f"s_lshr_b32 s{s_t0}, s{s_t0}, 29")
    else:
        e(f"s_mov_b32 s{s_t0}, 0")
    e(f"s_and_b32 s{s_c2}, s{s_t0}, 3")
    e(f"s_lshl_b32 s{s_cK}, s{s_t0}, 10")
    e(f"s_and_b32 s{s_cV}, s{s_cK}, 0x1000")
    e(f"s_lshl_b32 s{s_t1}, s{s_c2}, 8")
    e(f"s_or_b32 s{s_cV}, s{s_cV}, s{s_t1}")
    e(f"s_lshl_b32 s{s_t1}, s{s_c2}, 2")
    e(f"v_xor_b32 v{t0}, v{m}, v{kg}")
    e(f"v_xor_b32 v{t0}, s{s_t1}, v{t0}")
    e(f"v_lshl_add_u32 v{t1}, v{kg}, 8, s{s_kv}")
    for i in range(4):
        if i: e(f"v_xor_b32 v{t2}, {4*i}, v{t0}")
        e(f"v_lshl_add_u32 v{vKa+i}, v{t2 if i else t0}, 4, v{t1}")
    e(f"s_lshl_b32 s{s_m0b}, s{s_sw}, 13")
    e(f"s_add_u32 s{s_m0b}, s{s_m0b}, {L_K}")
    e(f"s_and_b32 s{s_t1}, s{s_cK}, 0xc00")
    e(f"s_or_b32 s{s_m0b}, s{s_m0b}, s{s_t1}")
    e(f"v_lshl_add_u32 v{vV}, v{kg}, {8 if 'vlin' in xp else 10}, s{s_kv}")
    if 'vlin' in xp: e(f"s_mov_b32 s{s_cV}, s{s_cK}")
    e(f"v_add_u32 v{vV}, v{vV}, v{m16}")
    e(f"s_mov_b32 s{srdA+2}, {1<<26}"); e(f"s_mov_b32 s{srdA+3}, 0x20000")
    e(f"s_mov_b32 s{srdB+2}, {1<<26}"); e(f"s_mov_b32 s{srdB+3}, 0x20000")
    e("s_waitcnt lgkmcnt(0)")
    e(f"s_mov_b32 s{srdA}, s{sK}"); e(f"s_mov_b32 s{srdA+1}, s{sK+1}")
    e(f"s_mov_b32 s{srdB}, s{sV}"); e(f"s_mov_b32 s{srdB+1}, s{sV+1}")
    e(f"s_load_dword s{s_E}, {sr(sWS,2)}, 0")
    if not early:
        e("s_barrier")
        stamp()
    def prep():
        late_consts(); blcalc()
        masks_and_tags()
        e(f"s_lshl_b32 s{s_t0}, s{s_h}, 7")
        e(f"s_lshl_b32 s{s_t1}, s{s_j1}, 6")
        e(f"s_add_u32 s{s_t0}, s{s_t0}, s{s_t1}")
        e(f"s_lshr_b32 s{s_t1}, s{s_sw}, 1")
        e(f"s_lshl_b32 s{s_t1}, s{s_t1}, 4")
        e(f"s_add_u32 s{s_t0}, s{s_t0}, s{s_t1}")
        e(f"s_and_b32 s{s_t1}, s{s_sw}, 1")
        e(f"s_lshl_b32 s{s_t1}, s{s_t1}, 1")
        e(f"s_add_u32 s{s_t0}, s{s_t0}, s{s_t1}")
        e(f"s_lshl_b32 s{s_t0}, s{s_t0}, 10")
        e(f"s_lshl_b32 s{s_t1}, s{s_cb}, 8")
        e(f"s_add_u32 s{s_t0}, s{s_t0}, s{s_t1}")
        e(f"v_lshl_add_u32 v{vWo}, v{kg}, 12, v{m16}")
        e(f"v_add_u32 v{vWo}, s{s_t0}, v{vWo}")
        e(f"s_lshl_b32 s{s_t0}, s{s_bw}, 8")
        e(f"v_lshl_add_u32 v{vQr}, v{kg}, 4, s{s_t0}")
        e(f"v_mov_b32 v{vZ}, 0")
        e(f"s_lshl_b32 s{s_t0}, s{s_sw}, 13")
        e(f"s_add_u32 s{s_t0}, s{s_t0}, {L_K}")
        e(f"v_xor_b32 v{t0}, s{s_c2}, v{m}")
        e(f"v_lshl_add_u32 v{t1}, v{t0}, 8, s{s_t0}")
        e(f"v_xor_b32 v{t0}, v{t0}, v{kg}")
        for s in range(4):
            if s: e(f"v_xor_b32 v{t2}, {4*s}, v{t0}")
            e(f"v_lshl_add_u32 v{vKr+s}, v{t2 if s else t0}, 4, v{t1}")
        e(f"s_mul_i32 s{s_t0}, s{s_sw}, {OPS}")
        e(f"v_lshl_add_u32 v{vOw}, v{m}, 5, s{s_t0}")
        e(f"v_lshl_add_u32 v{vOw}, v{kg}, 4, v{vOw}")
        e(f"s_lshl_b32 s{s_t0}, s{s_sw}, 4")
        e(f"v_mov_b32 v{vMw}, s{s_t0}")
        e(f"v_and_b32 v{t0}, 7, v0")
        e(f"s_lshl_b32 s{s_t0}, s{s_h}, 13")
        e(f"s_lshl_b32 s{s_t1}, s{s_j1}, 12")
        e(f"s_add_u32 s{s_t0}, s{s_t0}, s{s_t1}")
        e(f"s_lshr_b32 s{s_t1}, s{s_sw}, 1")
        e(f"s_lshl_b32 s{s_t1}, s{s_t1}, 10")
        e(f"s_add_u32 s{s_t0}, s{s_t0}, s{s_t1}")
        e(f"s_add_u32 s{s_t0}, s{s_t0}, {ABASE}")
        e(f"v_lshl_add_u32 v{vAp}, v{t0}, {4+al}, s{s_t0}")
        e(f"v_lshrrev_b32 v{t1}, {3+al}, v{lane}")
        e(f"v_lshl_add_u32 v{vAp}, v{t1}, {7+al}, v{vAp}")
        e(f"v_bfe_u32 v{t1}, v{lane}, 3, {al}")
        e(f"v_lshl_add_u32 v{vAp}, v{t1}, 4, v{vAp}")
        e(f"v_lshrrev_b32 v{t1}, 7, v{bl}")
        e(f"v_lshl_add_u32 v{vMp}, v{t0}, 4, v{t1}")
        e(f"s_lshl_b32 s{s_t0}, s{s_h}, 7")
        e(f"s_add_u32 s{s_t0}, s{s_t0}, {MLBASE}")
        e(f"v_add_u32 v{vMp}, s{s_t0}, v{vMp}")
        e(f"s_mul_i32 s{s_t0}, s{s_sw}, {SPS}")
        e(f"v_lshl_add_u32 v{vL}, v{lane}, 4, s{s_t0}")
        e(f"v_lshl_add_u32 v{t1}, v{kg}, 3, v{t0}")
        e(f"s_lshl_b32 s{s_t0}, s{s_sw}, 9")
        e(f"v_lshl_add_u32 v{t1}, v{t1}, 4, s{s_t0}")
        e(f"v_lshl_add_u32 v{vSr}, v{bl}, 2, v{t1}")
        e(f"s_lshl_b32 s{s_t0}, s{s_cb}, 16")
        e(f"s_lshl_b32 s{s_t1}, s{s_h}, 11")
        e(f"s_add_u32 s{s_t0}, s{s_t0}, s{s_t1}")
        e(f"s_lshl_b32 s{s_t1}, s{s_j1}, 10")
        e(f"s_add_u32 s{s_t0}, s{s_t0}, s{s_t1}")
        e(f"s_add_u32 s{s_t0}, s{s_t0}, {BIN}")
        e(f"v_add_u32 v{vSc}, s{s_t0}, v{t1}")
        e(f"v_cmp_ne_u32 {sr(sM[1],2)}, 0, v{bl}")
        e(f"s_bitcmp1_b32 s{s_sw}, 0")
        e(f"s_cselect_b64 {sr(s_par,2)}, -1, 0")
        tagpair(vTc, vTd, sM[1])
        e(f"v_mov_b32 v{mw+2}, 1"); e(f"v_mov_b32 v{mw+3}, 1")
    dn = sched or [vd]*16
    first_wait = min(n for n in range(16) if n >= dn[n])
    s_nx = 63
    w3 = 2 if wol == 3 else 1 if wol == 6 else 0
    def vload(n):
        i = n - 8
        e(f"s_xor_b32 s{s_so}, s{s_cV}, {(i//4)*4096+(i%4)*256}")
        e(f"buffer_load_dwordx4 {vr(Vf+i*4,4)}, v{vV}, {sr(srdB,4)}, s{s_so} offen{fV}")
    def woload():
        e(f"global_load_dwordx4 {vr(wo,4)}, v{vWo}, {sr(sWO,2)}{fW}")
        e(f"global_load_dwordx4 {vr(wo+4,4)}, v{vWo}, {sr(sWO,2)} offset:1024{fW}")
    for n in range(16):
        vd = dn[n]
        if early and n == early:
            e("s_barrier")
            stamp()
        if n == first_wait: prep()
        if n < 8:
            e(f"s_xor_b32 m0, s{s_m0b}, {n*1024}")
            e(f"s_xor_b32 s{s_so}, s{s_cK}, {n*1024}")
            if n >= vd: e(f"s_waitcnt vmcnt({vd-1})")
            e(f"buffer_load_dwordx4 v{vKa+n%4}, {sr(srdA,4)}, s{s_so} offen{fK} lds")
            if n == 7 and wol in (3, 6):
                e(f"s_waitcnt vmcnt({vd-1})")
                e(f"global_load_dwordx4 {vr(wo,4)}, v{vWo}, {sr(sWO,2)}{fW}")
            if n == 7 and wol == 3:
                e(f"s_waitcnt vmcnt({vd-1})")
                e(f"global_load_dwordx4 {vr(wo+4,4)}, v{vWo}, {sr(sWO,2)} offset:1024{fW}")
        else:
            e(f"s_waitcnt vmcnt({vd-1})")
            vload(n)
            if n == 8: stamp()
            if burst and n < 15 and n + w3 - (vd - 1) >= 8 - 1:
                e(f"ds_read_b32 v{fv}, v{vZ} offset:{L_FL}")
                e("s_waitcnt lgkmcnt(0)")
                e(f"v_cmp_ne_u32 vcc, 1, v{fv}")
                e(f"s_cbranch_vccz L_c{n}")
    e(f"s_mov_b32 s{s_nx}, 16")
    e(f"s_waitcnt vmcnt({8+w3})")
    e("s_branch L_qk")
    nxs = set()
    if burst:
        for n in range(8, 15):
            if not (n + w3 - (dn[n] - 1) >= 7): continue
            g.lab(f"L_c{n}")
            last = min(15, n + top)
            for k in range(n + 1, last + 1): vload(k)
            e(f"s_mov_b32 s{s_nx}, {last+1}")
            nxs.add(last + 1)
            e(f"s_waitcnt vmcnt({last-7+w3})")
            if n < 14: e("s_branch L_qk")
    g.lab("L_qk")
    for u in range(2):
        for s in range(4): e(f"ds_read_b128 {vr(Kf+(u*4+s)*4,4)}, v{vKr+s} offset:{u*4096}")
    stamp()
    e(f"s_mov_b32 s{s_cnt}, {spin*16}")
    g.lab("L_wq")
    e(f"ds_read_b32 v{fv}, v{vZ} offset:{L_FL}")
    for s in range(4): e(f"ds_read_b128 {vr(qf+4*s,4)}, v{vQr} offset:{L_Q+64*s}")
    e("s_waitcnt lgkmcnt(0)")
    e(f"v_cmp_ne_u32 vcc, 1, v{fv}")
    e("s_cbranch_vccz L_wq_ok")
    e("s_sleep 2")
    e(f"s_sub_u32 s{s_cnt}, s{s_cnt}, 1")
    e(f"s_cmp_lg_u32 s{s_cnt}, 0")
    e("s_cbranch_scc1 L_wq")
    g.lab("L_wq_ok")
    stamp()
    for s in range(4):
        mfma(D0, Kf+4*s, qf+4*s, None if s == 0 else D0)
        mfma(D1, Kf+16+4*s, qf+4*s, None if s == 0 else D1)
    e("s_nop 7")
    assert D1 == D0 + 4
    S = D0
    for i in range(0, 8, 2): rbf2(S+i, S+i+1, t0)
    for i in range(8): e(f"v_mul_f32 v{S+i}, s{s_scale}, v{S+i}")
    for i in range(0, 8, 2): rbf2(S+i, S+i+1, t0)
    e(f"v_max3_f32 v{mw}, v{S}, v{S+1}, v{S+2}")
    e(f"v_max3_f32 v{mw}, v{mw}, v{S+3}, v{S+4}")
    e(f"v_max3_f32 v{mw}, v{mw}, v{S+5}, v{S+6}")
    e(f"v_max_f32 v{mw}, v{mw}, v{S+7}")
    redgrp("v_max_f32", mw, t0)
    for i in range(8): e(f"v_sub_f32 v{S+i}, v{S+i}, v{mw}")
    for i in range(8): e(f"v_mul_f32 v{S+i}, s{s_l2e}, v{S+i}")
    for i in range(8): e(f"v_exp_f32 v{S+i}, v{S+i}")
    e(f"v_add_f32 v{lw}, v{S}, v{S+1}")
    for i in range(2, 8): e(f"v_add_f32 v{lw}, v{lw}, v{S+i}")
    redgrp("v_add_f32", lw, t0)
    e("s_mov_b64 exec, 1")
    e(f"ds_write_b128 v{vMw}, {vr(mw,4)} offset:{L_ML}")
    e("s_mov_b64 exec, -1")
    lo = min(nxs | {16})
    for k in sorted(nxs | {16}, reverse=True):
        if k > lo:
            e(f"s_cmp_eq_u32 s{s_nx}, {k}")
            e(f"s_cbranch_scc1 L_u{k}")
    for k in range(lo, 16):
        if k > lo: g.lab(f"L_u{k}")
        if rd: e(f"s_waitcnt vmcnt({rd-1})")
        vload(k)
    if lo < 16: g.lab("L_u16")
    if wol == 0: woload()
    for i in range(8): afrag(Kf+4*i, S+i)
    e(f"s_mov_b32 s{s_cnt}, {spin}")
    stamp()
    nwo = 2 if wol == 0 else 0
    for i in range(8):
        if wol >= 10 and i == wol - 10:
            woload(); nwo = 2
        e(f"s_waitcnt vmcnt({7-i+nwo})")
        mfma(D0, Kf+4*i, Vf+4*i, None if i == 0 else D0)
    stamp()
    if wol in (5, 6): e("s_nop 0")
    else: e(f"global_load_dwordx2 {vr(ml,2)}, v{vMp}, {sr(sWS,2)} sc1")
    if wol == 1:
        woload(); e("s_nop 3")
    else:
        e("s_nop 5")
    e("s_mov_b32 exec_hi, 0")
    e(f"ds_write_b128 v{vOw}, {vr(D0,4)} offset:{L_OP}")
    e("s_mov_b32 exec_hi, -1")
    e("s_waitcnt lgkmcnt(0)")
    e("s_barrier")
    if wol == 2: woload()
    if wol in (5, 6):
        e(f"global_load_dwordx2 {vr(ml,2)}, v{vMp}, {sr(sWS,2)} sc1")
        e("s_barrier")
        if wol == 5: woload()
        else: e(f"global_load_dwordx4 {vr(wo+4,4)}, v{vWo}, {sr(sWO,2)} offset:1024{fW}")
    if mlop and not b4b: e(f"global_load_dwordx4 {vr(op,4)}, v{vAp}, {sr(sWS,2)} sc1")
    e(f"s_waitcnt vmcnt({(2 if wol in (1, 2, 5) else 1 if wol == 6 else 0) + (1 if mlop and not b4b else 0)})")
    e("s_branch L_pml_c")
    g.lab("L_pml")
    e(f"global_load_dwordx2 {vr(ml,2)}, v{vMp}, {sr(sWS,2)} sc1")
    e("s_waitcnt vmcnt(0)")
    g.lab("L_pml_c")
    e(f"v_xor_b32 v{ml}, v{ml}, v{vTc}")
    e(f"v_xor_b32 v{ml+1}, v{ml+1}, v{vTd}")
    e(f"v_or_b32 v{t0}, v{ml}, v{ml+1}")
    poll_tail(t0, "L_pml", slp)
    stamp()
    e(f"v_mov_b32 v{t0}, v{ml}")
    red8("v_max_f32", [t0])
    e(f"v_sub_f32 v{t0}, v{ml}, v{t0}")
    e(f"v_mul_f32 v{t0}, s{s_l2e}, v{t0}")
    e(f"v_exp_f32 v{t0}, v{t0}")
    if b4b: e("s_nop 0")
    else: e(f"global_load_dwordx4 {vr(op2 if mlop else op,4)}, v{vAp}, {sr(sWS,2)} sc1")
    e(f"v_mul_f32 v{t1}, v{t0}, v{ml+1}")
    red8("v_add_f32", [t1])
    e(f"v_rcp_f32 v{t1}, v{t1}")
    e(f"s_mov_b32 s{s_cnt}, {spin}")
    e(f"v_mul_f32 v{t3}, v{t0}, v{t1}")
    if b4b:
        if wol not in (5, 6): e("s_barrier")
        if wol == 4: woload()
        e(f"global_load_dwordx4 {vr(op,4)}, v{vAp}, {sr(sWS,2)} sc1")
        if mlop:
            e("s_sleep 1")
            e(f"global_load_dwordx4 {vr(op2,4)}, v{vAp}, {sr(sWS,2)} sc1")
    def opchk(z):
        for r in range(4): e(f"v_xor_b32 v{z+r}, s{sT[r]}, v{z+r}")
        e(f"v_or_b32 v{t0}, v{z}, v{z+1}")
        e(f"v_or3_b32 v{t0}, v{t0}, v{z+2}, v{z+3}")
    if not mlop:
        e("s_branch L_pa2")
        g.lab("L_pa")
        e(f"global_load_dwordx4 {vr(op,4)}, v{vAp}, {sr(sWS,2)} sc1")
        g.lab("L_pa2")
        e("s_waitcnt vmcnt(0)")
        opchk(op)
        poll_tail(t0, "L_pa", slp)
        stamp()
        e(f"v_cndmask_b32 v{op}, v{op}, v{op+2}, {sr(s_par,2)}")
        e(f"v_cndmask_b32 v{op+1}, v{op+1}, v{op+3}, {sr(s_par,2)}")
    else:
        g.lab("L_pa")
        for z, o in ((op, op2), (op2, op)):
            e("s_waitcnt vmcnt(1)")
            opchk(z)
            e(f"v_cndmask_b32 v{ml}, v{z}, v{z+2}, {sr(s_par,2)}")
            e(f"v_cndmask_b32 v{ml+1}, v{z+1}, v{z+3}, {sr(s_par,2)}")
            e(f"v_and_b32 v{t0}, 0xff, v{t0}")
            e(f"v_cmp_ne_u32 vcc, 0, v{t0}")
            e("s_cbranch_vccz L_pa_ok")
            if slp: e(f"s_sleep {slp}")
            e(f"global_load_dwordx4 {vr(z,4)}, v{vAp}, {sr(sWS,2)} sc1")
        e(f"s_sub_u32 s{s_cnt}, s{s_cnt}, 1")
        e(f"s_cmp_lg_u32 s{s_cnt}, 0")
        e("s_cbranch_scc1 L_pa")
        g.lab("L_pa_ok")
        stamp()
        op = ml
    e(f"v_mul_f32 v{op}, v{op}, v{t3}")
    e(f"v_mul_f32 v{op+1}, v{op+1}, v{t3}")
    red8("v_add_f32", [op, op+1])
    afrag(A0, op); afrag(A1, op+1)
    e("s_nop 0")
    mfma(D0, A0, wo, None)
    mfma(D0, A1, wo+4, D0)
    e("s_nop 7")
    e(f"ds_write_b128 v{vL}, {vr(D0,4)} offset:{L_SP}")
    e("s_waitcnt lgkmcnt(0)")
    e("s_barrier")
    stamp()
    e(f"s_cmp_ge_u32 s{s_sw}, 2")
    e("s_cbranch_scc1 L_sdone")
    R = Vf
    for i in range(4): e(f"ds_read_b128 {vr(R+4*i,4)}, v{vSr} offset:{L_SP+1024*i}")
    e("s_waitcnt lgkmcnt(2)")
    for r in range(4): e(f"v_add_f32 v{R+r}, v{R+r}, v{R+4+r}")
    e("s_waitcnt lgkmcnt(0)")
    for r in range(4): e(f"v_add_f32 v{R+8+r}, v{R+8+r}, v{R+12+r}")
    for r in range(4): e(f"v_add_f32 v{R+r}, v{R+r}, v{R+8+r}")
    for r in range(4): dpp("v_add_f32", R+r, R+r, R+r, "row_ror:8")
    tag4(R)
    e("s_mov_b32 exec_lo, 0x00ff00ff"); e("s_mov_b32 exec_hi, 0x00ff00ff")
    e(f"global_store_dwordx4 v{vSc}, {vr(R,4)}, {sr(sWS,2)} sc1")
    g.lab("L_sdone")
    if b6: e("s_barrier")
    stamp()
    dump_stamps(Kf)
    g.lab("L_end")
    e("s_endpgm")

    if "nows" in xp or "noaux" in xp:
        i0 = g.L.index("L_stream:")
        keep = []
        for n, l in enumerate(g.L):
            drop = False
            if n < i0:
                isdump = "offset:" in l and "global_store_dwordx4" in l and "sc1" not in l
                if ("s[40:41]" in l and ("global_" in l) and not isdump): drop = True
                if "glc" in l: drop = True
                if "noaux" in xp and ("buffer_load" in l or "global_load" in l): drop = True
            if not drop: keep.append(l)
        g.L = keep
    nv = (g.maxv + 7) // 8 * 8
    ldsb = L_K + 65536 if kdma else L_K
    hdr = open(os.path.join(os.path.dirname(os.path.abspath(__file__)), "..", "cdna_kernels", NAME + ".s.ref")).read().split("\n")
    top = [l for l in hdr if l.startswith(";") and "@launch" not in l and "Override" not in l and "grid=ceil" not in l]
    out = top + [f"; @launch grid=(256,1,1) block=({NW*64},1,1) lds={ldsb}",
        '.amdgcn_target "amdgcn-amd-amdhsa--gfx950"', ".text", f".globl {NAME}_kernel", ".p2align 8",
        f".type {NAME}_kernel,@function", f"{NAME}_kernel:"] + g.L + [
        '.section .rodata,"a"', ".p2align 6", f".amdhsa_kernel {NAME}_kernel",
        f"  .amdhsa_next_free_vgpr {nv}", "  .amdhsa_next_free_sgpr 102", f"  .amdhsa_accum_offset {nv}",
        "  .amdhsa_group_segment_fixed_size 0", "  .amdhsa_kernarg_size 104", "  .amdhsa_user_sgpr_count 2",
        "  .amdhsa_user_sgpr_kernarg_segment_ptr 1", "  .amdhsa_system_sgpr_workgroup_id_x 1", ".end_amdhsa_kernel", ""]
    return "\n".join(out)

if __name__ == "__main__":
    import argparse
    ap = argparse.ArgumentParser()
    ap.add_argument("-o", default=None)
    ap.add_argument("--diag", action="store_true")
    ap.add_argument("--opt", default="")
    a = ap.parse_args()
    kw = eval("dict(" + a.opt + ")")
    txt = gen(diag=a.diag, **kw)
    path = a.o or os.path.join(os.path.dirname(os.path.abspath(__file__)), "..", "cdna_kernels", NAME + ".s")
    open(path, "w").write(txt)
    print("wrote", path, len(txt.split("\n")), "lines", [l for l in txt.split("\n") if "next_free_vgpr" in l])
```
